```python
import torch

def _softmax(x, axis=-1):
    return torch.softmax(x, dim=axis)
def _gelu(x):
    return torch.nn.functional.gelu(x, approximate="tanh")
def _silu(x):
    return torch.nn.functional.silu(x)
def _sigmoid(x):
    return torch.sigmoid(x)
def _layernorm(x, axis=-1, eps=1e-5):
    m = x.mean(dim=axis, keepdim=True)
    v = x.var(dim=axis, keepdim=True, unbiased=False)
    return (x - m) / torch.sqrt(v + eps)
def _scatter_add(tgt, idx, src, axis=0):
    return tgt.clone().index_add_(axis, idx, src)
def _segment_sum(src, seg, n):
    out = torch.zeros((n,) + src.shape[1:], dtype=src.dtype)
    return out.index_add_(0, seg, src)
def _pad(x, pw):
    flat = tuple(v for pair in reversed(pw) for v in pair)
    return torch.nn.functional.pad(x, flat)

kernel_name = 'standalone__modern_conv_block_convnext_v2__vision'

def setup_inputs():

    _w = (lambda a: (lambda t: t.to(torch.bfloat16) if t.is_floating_point() else t)(torch.as_tensor(a)))
    H = W = 224
    C = 96
    K = 7
    return {
        "x": _w((lambda *s: torch.randn(*s, dtype=torch.bfloat16) * 0.05)(1, H, W, C)),
        "dw": _w((lambda *s: torch.randn(*s, dtype=torch.bfloat16) * 0.05)(K, K, C)),
        "w1": _w((lambda *s: torch.randn(*s, dtype=torch.bfloat16) * 0.05)(C, 4 * C)),
        "w2": _w((lambda *s: torch.randn(*s, dtype=torch.bfloat16) * 0.05)(4 * C, C)),
        "grn_gamma": _w((lambda *s: torch.randn(*s, dtype=torch.bfloat16) * 0.05)(4 * C)),
        "grn_beta": _w((lambda *s: torch.randn(*s, dtype=torch.bfloat16) * 0.05)(4 * C)),
    }

def reference(x, dw, w1, w2, grn_gamma, grn_beta):
    B, H, W, C = x.shape
    K = dw.shape[0]
    pad = K // 2
    xp = _pad(x, ((0,0),(pad,pad),(pad,pad),(0,0)))
    out = torch.zeros_like(x)
    for i in range(K):
        for j in range(K):
            out = out + xp[:, i:i+H, j:j+W, :] * dw[i, j][None, None, None, :]
    h = _layernorm(out, axis=-1)
    h = torch.einsum('bhwc,ce->bhwe', h, w1)
    h = _gelu(h)
    gx = torch.sqrt((h * h).sum(axis=(1, 2), keepdims=True) + 1e-6)
    nx = gx / (gx.mean(axis=-1, keepdims=True) + 1e-6)
    h = grn_gamma * (h * nx) + grn_beta + h
    h = torch.einsum('bhwe,ec->bhwc', h, w2)
    return x + h
```

```python
import sys, struct
NAME = "standalone__modern_conv_block_convnext_v2__vision"
OPT = dict(a.split("=") for a in sys.argv[2:]) if len(sys.argv) > 2 else {}
STAMP = int(OPT.get("stamp", 0))
L = []
def I(s): L.append("    " + s)
def LBL(s): L.append(s + ":")
def C(s): L.append("    ; " + s)
def f2u(f): return struct.unpack("<I", struct.pack("<f", f))[0]
def v(a, n=1): return f"v{a}" if n == 1 else f"v[{a}:{a+n-1}]"
def s(a, n=1): return f"s{a}" if n == 1 else f"s[{a}:{a+n-1}]"

CS, OS = 808, 6480
R2 = 77888
RS, PS = 5616, 400
MISC = 158208
SOFF, BOFF = MISC, MISC + 1536
LDS = MISC + 1536 + 768
HLEFT = 147456
PART_BYTES = 256 * 1536
WS_BYTES = PART_BYTES + 1536
XB = 224 * 224 * 96 * 2
SX, SDW, SW1, SW2, SG, SB, SO, SD, SWS = 4, 8, 12, 16, 20, 24, 28, 32, 36
S_WAVE, S_Y0, S_X0, S_T0, S_T1, S_T2, S_T3 = 40, 41, 42, 43, 44, 45, 46
S_OOB, S_SELLO, S_SELHI = 47, 66, 67
S_K = 68
S_EX = 74
S_CNT = 76
S_G6, S_HH = 77, 78
S_ST = 80
nstamp = [0]
def stamp():
    if STAMP:
        I(f"s_memtime {s(S_ST + 2*nstamp[0], 2)}")
        nstamp[0] += 1
def yoff(p): return (16*p // 14) * RS + (16*p % 14) * PS

hdr = open("cdna_kernels/" + NAME + ".s.ref").read().split("\n")
for ln in hdr:
    if ln.startswith("; @launch"):
        L.append(f"; @launch grid=(256,1,1) block=(768,1,1) lds={LDS}")
    elif ln.startswith(";"):
        L.append(ln)
    else:
        break
L += ['.amdgcn_target "amdgcn-amd-amdhsa--gfx950"', ".text", f".globl {NAME}_kernel", ".p2align 8",
      f".type {NAME}_kernel,@function", f"{NAME}_kernel:"]

I("s_cmp_ge_u32 s2, 256")
I("s_cbranch_scc1 L_end")
I("s_load_dwordx16 s[48:63], s[0:1], 0")
I("s_load_dwordx2 s[64:65], s[0:1], 64")
stamp()
I("v_lshrrev_b32 v2, 6, v0")
I("v_and_b32 v1, 63, v0")
I(f"v_readfirstlane_b32 {s(S_WAVE)}, v2")
C("tile coords: xcd-local 4x8 blocks of tiles (speed only)")
I(f"s_and_b32 {s(S_T0)}, s2, 7")
I(f"s_lshr_b32 {s(S_T1)}, s2, 3")
I(f"s_lshr_b32 {s(S_T2)}, {s(S_T0)}, 1")
I(f"s_lshl_b32 {s(S_T2)}, {s(S_T2)}, 2")
I(f"s_lshr_b32 {s(S_T3)}, {s(S_T1)}, 3")
I(f"s_add_u32 {s(S_T2)}, {s(S_T2)}, {s(S_T3)}")
I(f"s_mul_i32 {s(S_Y0)}, {s(S_T2)}, 14")
I(f"s_and_b32 {s(S_T2)}, {s(S_T0)}, 1")
I(f"s_lshl_b32 {s(S_T2)}, {s(S_T2)}, 3")
I(f"s_and_b32 {s(S_T3)}, {s(S_T1)}, 7")
I(f"s_add_u32 {s(S_T2)}, {s(S_T2)}, {s(S_T3)}")
I(f"s_mul_i32 {s(S_X0)}, {s(S_T2)}, 14")
I(f"s_mov_b32 {s(S_OOB)}, 0x80000000")
I(f"s_mov_b32 {s(S_SELLO)}, 0x05040100")
I(f"s_mov_b32 {s(S_SELHI)}, 0x07060302")
for k in range(6): I(f"s_mov_b32 {s(S_K+k)}, {12288*k}")
I(f"s_cmp_ge_u32 {s(S_WAVE)}, 6")
I(f"s_cselect_b32 {s(S_HH)}, 1, 0")
I(f"s_mul_i32 {s(S_T0)}, {s(S_HH)}, 6")
I(f"s_sub_u32 {s(S_G6)}, {s(S_WAVE)}, {s(S_T0)}")
I(f"s_sub_u32 {s(S_T0)}, {s(S_Y0)}, 3")
I(f"s_sub_u32 {s(S_T1)}, {s(S_X0)}, 3")
I(f"s_movk_i32 {s(S_T2)}, 224")
I(f"s_movk_i32 {s(S_T3)}, 192")
for k in range(2):
    I(f"v_add_u32 v3, {768*k}, v0")
    I("v_mul_u32_u24 v4, 43691, v3")
    I("v_lshrrev_b32 v4, 19, v4")
    I("v_mul_u32_u24 v5, 12, v4")
    I("v_sub_u32 v5, v3, v5")
    I("v_mul_u32_u24 v6, 205, v4")
    I("v_lshrrev_b32 v6, 10, v6")
    I("v_mul_u32_u24 v7, 5, v6")
    I("v_sub_u32 v7, v4, v7")
    I(f"v_mul_u32_u24 v8, {OS}, v5")
    I("v_mul_u32_u24 v9, 40, v6")
    I("v_lshl_add_u32 v9, v7, 3, v9")
    I(f"v_add_u32 {v(64+k)}, v8, v9")
    I(f"v_add_u32 v6, {s(S_T0)}, v6")
    I("v_lshlrev_b32 v7, 2, v7")
    I(f"v_add_u32 v7, {s(S_T1)}, v7")
    I(f"v_mul_lo_u32 v8, v6, {s(S_T2)}")
    I("v_add_u32 v8, v8, v7")
    I(f"v_mul_lo_u32 v8, v8, {s(S_T3)}")
    I("v_lshl_add_u32 v8, v5, 4, v8")
    I(f"v_cmp_gt_u32 s[90:91], {s(S_T2)}, v6")
    if k == 1:
        I("v_cmp_gt_u32 vcc, 1200, v3")
        I("s_nop 1")
        I("s_and_b64 s[90:91], s[90:91], vcc")
    I(f"v_mov_b32 v10, {s(S_OOB)}")
    for i in range(4):
        I(f"v_add_u32 v9, {i}, v7")
        I(f"v_cmp_gt_u32 vcc, {s(S_T2)}, v9")
        I(f"v_add_u32 v11, {192*i}, v8")
        I("s_and_b64 vcc, vcc, s[90:91]")
        I("s_nop 1")
        I(f"v_cndmask_b32 {v(56+4*k+i)}, v10, v11, vcc")
I("v_mul_u32_u24 v3, 683, v0")
I("v_lshrrev_b32 v3, 16, v3")
I("v_mul_u32_u24 v4, 96, v3")
I("v_sub_u32 v4, v0, v4")
I("v_mul_u32_u24 v5, 1344, v3")
I("v_lshl_add_u32 v5, v4, 1, v5")
I("v_mul_u32_u24 v6, 7, v4")
I("v_add_u32 v6, v6, v3")
I("v_mul_u32_u24 v6, 48, v6")
I(f"v_add_u32 v66, {R2}, v6")
I("s_waitcnt lgkmcnt(0)")
def srd(d, b, n):
    I(f"s_mov_b32 {s(d)}, {s(b)}"); I(f"s_and_b32 {s(d+1)}, {s(b+1)}, 0xffff")
    I(f"s_mov_b32 {s(d+2)}, {n}"); I(f"s_mov_b32 {s(d+3)}, 0x00020000")
srd(SDW, 50, 7*7*96*2); srd(SX, 48, XB)
srd(SWS, 64, WS_BYTES); srd(SB, 58, 768)
C("wave 10: zero this WG's hand-off slots; wave 11: stage beta")
I(f"s_cmp_eq_u32 {s(S_WAVE)}, 10")
I("s_cbranch_scc0 L_nz")
I("v_mov_b32 v12, 0"); I("v_mov_b32 v13, 0"); I("v_mov_b32 v14, 0"); I("v_mov_b32 v15, 0")
I(f"s_mul_i32 {s(S_T0)}, s2, 1536")
I("v_lshlrev_b32 v7, 4, v1")
I(f"buffer_store_dwordx4 v[12:15], v7, {s(SWS,4)}, {s(S_T0)} offen sc1")
I(f"s_lshl_b32 {s(S_T1)}, s2, 4")
I(f"s_add_u32 {s(S_T1)}, {s(S_T1)}, {PART_BYTES}")
I(f"s_add_u32 {s(S_T0)}, {s(S_T0)}, 1024")
I(f"v_add_u32 v8, {s(S_T0)}, v7")
I(f"v_mov_b32 v9, {s(S_T1)}")
I(f"v_mov_b32 v10, {s(S_OOB)}")
I("v_cmp_eq_u32 vcc, 32, v1")
I("s_nop 1")
I("v_cndmask_b32 v9, v10, v9, vcc")
I("v_cmp_gt_u32 vcc, 32, v1")
I("s_nop 1")
I("v_cndmask_b32 v8, v9, v8, vcc")
I(f"buffer_store_dwordx4 v[12:15], v8, {s(SWS,4)}, 0 offen sc1")
LBL("L_nz")
I(f"s_cmp_eq_u32 {s(S_WAVE)}, 11")
I("s_cbranch_scc0 L_nb")
I("v_lshlrev_b32 v7, 4, v1")
I(f"buffer_load_dwordx4 v[12:15], v7, {s(SB,4)}, 0 offen")
LBL("L_nb")
for j in range(7):
    I(f"buffer_load_ushort {v(48+j)}, v5, {s(SDW,4)}, 0 offen offset:{192*j}")
for k in range(2):
    for i in range(4):
        I(f"buffer_load_dwordx4 {v(16+16*k+4*i,4)}, {v(56+4*k+i)}, {s(SX,4)}, 0 offen")
srd(SW1, 52, 96*384*2); srd(SW2, 54, 96*384*2); srd(SG, 56, 768); srd(SO, 60, XB); srd(SD, 62, 256)
I("s_waitcnt vmcnt(8)")
I(f"s_cmp_eq_u32 {s(S_WAVE)}, 11")
I("s_cbranch_scc1 L_beta")
C("build Toeplitz source table [0,R0,R1,R2][R3,0,0,O0][O1,O2,O3,0]")
I("v_mov_b32 v68, 0")
I("v_lshl_or_b32 v69, v49, 16, v48")
I("v_lshl_or_b32 v70, v51, 16, v50")
I("v_lshl_or_b32 v71, v53, 16, v52")
I("v_mov_b32 v72, v54"); I("v_mov_b32 v73, 0"); I("v_mov_b32 v74, 0")
I("v_lshlrev_b32 v75, 16, v48")
I("v_lshl_or_b32 v76, v50, 16, v49")
I("v_lshl_or_b32 v77, v52, 16, v51")
I("v_lshl_or_b32 v78, v54, 16, v53")
I("v_mov_b32 v79, 0")
I("v_cmp_gt_u32 vcc, 673, v0")
I(f"s_and_saveexec_b64 {s(S_EX,2)}, vcc")
I(f"v_mov_b32 v7, {R2 + 672*48}")
I("v_cmp_eq_u32 vcc, 672, v0")
I("s_nop 1")
I("v_cndmask_b32 v66, v66, v7, vcc")
I("ds_write_b128 v66, v[68:71]")
I("ds_write_b128 v66, v[72:75] offset:16")
I("ds_write_b128 v66, v[76:79] offset:32")
I(f"s_mov_b64 exec, {s(S_EX,2)}")
I("s_branch L_xw")
LBL("L_beta")
I("v_cmp_gt_u32 vcc, 48, v1")
I(f"s_and_saveexec_b64 {s(S_EX,2)}, vcc")
I(f"v_add_u32 v7, {BOFF}, v7")
I("ds_write_b128 v7, v[12:15]")
I(f"s_mov_b64 exec, {s(S_EX,2)}")
LBL("L_xw")
def xpose(k):
    b = 16 + 16*k
    for d in range(4):
        for hf, sel in ((0, S_SELLO), (1, S_SELHI)):
            t = 80 + 2*(2*d+hf)
            I(f"v_perm_b32 {v(t)}, {v(b+4+d)}, {v(b+d)}, {s(sel)}")
            I(f"v_perm_b32 {v(t+1)}, {v(b+12+d)}, {v(b+8+d)}, {s(sel)}")
    for c in range(8):
        I(f"ds_write_b64 {v(64+k)}, {v(80+2*c,2)} offset:{c*CS}")
I("s_waitcnt vmcnt(4)")
xpose(0)
I("s_waitcnt vmcnt(0)")
I(f"s_cmp_ge_u32 {s(S_WAVE)}, 7")
I("s_cbranch_scc1 L_x1skip")
I("v_cmp_gt_u32 vcc, 432, v0")
I(f"s_and_saveexec_b64 {s(S_EX,2)}, vcc")
I("s_waitcnt lgkmcnt(0)")
xpose(1)
I(f"s_mov_b64 exec, {s(S_EX,2)}")
LBL("L_x1skip")
I(f"s_cmp_eq_u32 {s(S_WAVE)}, 10")
I("s_cbranch_scc0 L_ncnt")
I("v_mov_b32 v7, 0"); I("v_mov_b32 v8, 1")
I("s_mov_b64 exec, 1")
I(f"buffer_atomic_add v8, v7, {s(SD,4)}, 0 offen")
I("s_mov_b64 exec, -1")
LBL("L_ncnt")
I("v_lshrrev_b32 v2, 2, v1")
I("v_and_b32 v3, 3, v1")
I(f"s_lshl_b32 {s(S_T0)}, {s(S_G6)}, 4")
I(f"v_add_u32 v4, {s(S_T0)}, v2")
I("v_mul_u32_u24 v5, 336, v4")
I("v_and_b32 v6, 1, v3")
I("v_mul_u32_u24 v6, 24, v6")
I("v_lshrrev_b32 v7, 1, v3")
I("v_xor_b32 v7, 1, v7")
I("v_lshl_add_u32 v6, v7, 2, v6")
I(f"v_add_u32 v6, {R2}, v6")
I("v_add_u32 v5, v5, v6")
I("v_lshrrev_b32 v6, 3, v4")
I(f"v_mul_u32_u24 v6, {OS}, v6")
I("v_and_b32 v7, 7, v4")
I(f"v_mul_u32_u24 v7, {CS}, v7")
I("v_add_u32 v6, v6, v7")
I("v_mul_u32_u24 v7, 160, v3")
I(f"s_mul_i32 {s(S_T1)}, {s(S_HH)}, 80")
I(f"v_add3_u32 v6, v6, v7, {s(S_T1)}")
I(f"v_mul_u32_u24 v7, {4*RS}, v3")
I("v_lshl_add_u32 v7, v4, 2, v7")
I(f"s_mul_i32 {s(S_T1)}, {s(S_HH)}, {2*RS}")
I(f"s_add_u32 {s(S_T1)}, {s(S_T1)}, {R2}")
I(f"v_add_u32 v7, {s(S_T1)}, v7")
I("v_mul_u32_u24 v8, 1366, v0")
I("v_lshrrev_b32 v8, 16, v8")
I("v_mul_u32_u24 v9, 48, v8")
I("v_sub_u32 v9, v0, v9")
I("v_and_b32 v10, 3, v8")
I("v_bfe_u32 v11, v8, 3, 1")
I("v_lshl_or_b32 v10, v11, 2, v10")
I("v_lshlrev_b32 v10, 1, v10")
I("v_xor_b32 v9, v9, v10")
I("v_mul_u32_u24 v8, 768, v8")
I("v_lshl_add_u32 v8, v9, 4, v8")
I("s_waitcnt lgkmcnt(0)")
I("s_barrier")
stamp()
A0, B0, AC = 16, 58, 80
for kb in range(5):
    I(f"ds_read_b64 {v(B0+2*kb,2)}, v6 offset:{kb*8}")
for i in range(7):
    for q in range(3):
        I(f"ds_read2_b32 {v(A0+6*i+2*q,2)}, v5 offset0:{12*i+2*q} offset1:{12*i+2*q+1}")
first = set()
for rr in range(8):
    bb = B0 + 10*(rr % 2)
    if rr < 7:
        nb = B0 + 10*((rr+1) % 2)
        for kb in range(5):
            I(f"ds_read_b64 {v(nb+2*kb,2)}, v6 offset:{(rr+1)*40+kb*8}")
        I("s_waitcnt lgkmcnt(5)")
    else:
        I("s_waitcnt lgkmcnt(0)")
    for kq in range(3):
        for hl in range(2):
            i = rr - hl
            if not (0 <= i <= 6): continue
            for a in range(4):
                kb = a + kq
                if kb > 4: continue
                acc = AC + 16*hl + 4*a
                cin = v(acc, 4) if (hl, a) in first else "0"
                first.add((hl, a))
                I(f"v_mfma_f32_4x4x4_16b_bf16 {v(acc,4)}, {v(A0+6*i+2*kq,2)}, {v(bb+2*kb,2)}, {cin}")
I("s_barrier")
stamp()
def dma(srdreg, voff):
    I(f"s_lshl_b32 {s(S_T0)}, {s(S_WAVE)}, 10")
    for k in range(6):
        I(f"s_add_u32 m0, {s(S_T0)}, {s(S_K+k)}")
        I("s_nop 0")
        I(f"buffer_load_dwordx4 {voff}, {s(srdreg,4)}, {s(S_K+k)} offen lds")
dma(SW1, "v8")
I(f"s_cmp_eq_u32 {s(S_HH)}, 1")
I("s_cbranch_scc0 L_cw")
I("s_mov_b32 exec_lo, 0x77777777")
I("s_mov_b32 exec_hi, 0x77777777")
LBL("L_cw")
for hl in range(2):
    for col in range(14):
        I(f"ds_write_b32 v7, {v(AC+16*hl+col)} offset:{hl*RS+col*PS}")
I("s_mov_b64 exec, -1")
I("v_and_b32 v2, 15, v1")
I("v_lshrrev_b32 v3, 4, v1")
I("v_lshlrev_b32 v4, 4, v1")
def pixaddr(dst, nreg):
    I(f"v_mul_u32_u24 v10, 4682, {nreg}")
    I("v_lshrrev_b32 v10, 16, v10")
    I("v_mul_u32_u24 v11, 14, v10")
    I(f"v_sub_u32 v11, {nreg}, v11")
    I(f"v_mul_u32_u24 v10, {RS}, v10")
    I(f"v_mul_u32_u24 v11, {PS}, v11")
    I(f"v_add_u32 v10, {R2}, v10")
    I("v_lshl_add_u32 v11, v3, 5, v11")
    I(f"v_add_u32 {dst}, v10, v11")
I(f"s_lshl_b32 {s(S_T0)}, {s(S_WAVE)}, 4")
I(f"v_add_u32 v5, {s(S_T0)}, v2")
pixaddr("v5", "v5")
I(f"v_mov_b32 v12, {hex(f2u(-1.0/96))}")
I(f"v_mov_b32 v13, {hex(f2u(1.0/96))}")
I(f"v_mov_b32 v14, {hex(f2u(1e-5))}")
I(f"v_readfirstlane_b32 {s(S_T1)}, v5")
I("s_waitcnt lgkmcnt(0)")
I("s_barrier")
stamp()
def xgroup(r, t):
    I(f"v_mov_b32 {v(t)}, {v(r)}"); I("s_nop 1")
    I(f"v_permlane16_swap_b32 {v(r)}, {v(t)}"); I("s_nop 1")
    I(f"v_add_f32 {v(r)}, {v(r)}, {v(t)}")
    I(f"v_mov_b32 {v(t)}, {v(r)}"); I("s_nop 1")
    I(f"v_permlane32_swap_b32 {v(r)}, {v(t)}"); I("s_nop 1")
    I(f"v_add_f32 {v(r)}, {v(r)}, {v(t)}")
def LN(left):
    X, T = 16, 40
    for sI in range(3):
        for t in range(2):
            I(f"ds_read_b128 {v(X+8*sI+4*t,4)}, v5 offset:{sI*128+t*16}")
    I(f"v_add_u32 v6, {s(S_T1)}, v4")
    I("s_waitcnt lgkmcnt(0)")
    for j in range(6): I(f"v_pk_add_f32 {v(T+2*j,2)}, {v(X+2*j,2)}, {v(X+12+2*j,2)}")
    for j in range(3): I(f"v_pk_add_f32 {v(T+2*j,2)}, {v(T+2*j,2)}, {v(T+6+2*j,2)}")
    I(f"v_pk_add_f32 {v(T,2)}, {v(T,2)}, {v(T+2,2)}")
    I(f"v_pk_add_f32 {v(T,2)}, {v(T,2)}, {v(T+4,2)}")
    I(f"v_add_f32 {v(T)}, {v(T)}, {v(T+1)}")
    xgroup(T, T+1)
    I(f"v_mul_f32 {v(T)}, {v(T)}, v12")
    I(f"v_mov_b32 {v(T+1)}, {v(T)}")
    for j in range(12): I(f"v_pk_add_f32 {v(X+2*j,2)}, {v(X+2*j,2)}, {v(T,2)}")
    for j in range(4): I(f"v_pk_mul_f32 {v(T+2+2*j,2)}, {v(X+2*j,2)}, {v(X+2*j,2)}")
    for j in range(4, 12): I(f"v_pk_fma_f32 {v(T+2+2*(j%4),2)}, {v(X+2*j,2)}, {v(X+2*j,2)}, {v(T+2+2*(j%4),2)}")
    I(f"v_pk_add_f32 {v(T+2,2)}, {v(T+2,2)}, {v(T+4,2)}")
    I(f"v_pk_add_f32 {v(T+6,2)}, {v(T+6,2)}, {v(T+8,2)}")
    I(f"v_pk_add_f32 {v(T+2,2)}, {v(T+2,2)}, {v(T+6,2)}")
    I(f"v_add_f32 {v(T)}, {v(T+2)}, {v(T+3)}")
    xgroup(T, T+1)
    I(f"v_fma_f32 {v(T)}, {v(T)}, v13, v14")
    I(f"v_rsq_f32 {v(T)}, {v(T)}")
    I("s_nop 0")
    I(f"v_mov_b32 {v(T+1)}, {v(T)}")
    for j in range(12): I(f"v_pk_mul_f32 {v(X+2*j,2)}, {v(X+2*j,2)}, {v(T,2)}")
    for j in range(12): I(f"v_cvt_pk_bf16_f32 {v(T+j)}, {v(X+2*j)}, {v(X+2*j+1)}")
    if left:
        I("v_cmp_gt_u32 vcc, 4, v2"); I("s_nop 1")
        for j in range(12): I(f"v_cndmask_b32 {v(T+j)}, 0, {v(T+j)}, vcc")
    for sI in range(3):
        I(f"ds_write_b128 v6, {v(T+4*sI,4)} offset:{sI*1024}")
LN(False)
I(f"s_cmp_eq_u32 {s(S_WAVE)}, 0")
I("s_cbranch_scc0 L_ln2")
I("v_min_u32 v5, 3, v2")
I("v_add_u32 v5, 192, v5")
pixaddr("v5", "v5")
I(f"s_mov_b32 {s(S_T1)}, {R2 + yoff(12)}")
I("s_waitcnt lgkmcnt(0)")
LN(True)
LBL("L_ln2")
I("v_bfe_u32 v9, v1, 2, 2")
I("v_lshl_add_u32 v10, v3, 3, v9")
I("v_mul_u32_u24 v10, 768, v10")
I("v_and_b32 v11, 3, v1")
I("v_lshl_add_u32 v10, v11, 3, v10")
I("v_and_b32 v11, 1, v3")
I("v_lshl_or_b32 v9, v11, 2, v9")
I(f"s_lshl_b32 {s(S_T0)}, {s(S_WAVE)}, 1")
I(f"v_xor_b32 v11, {s(S_T0)}, v9")
I("v_lshl_add_u32 v5, v11, 5, v10")
I("v_xor_b32 v11, 1, v11")
I("v_lshl_add_u32 v6, v11, 5, v10")
YB1 = 40000
I(f"v_add_u32 v7, {R2}, v4")
I(f"v_add_u32 v8, {R2+YB1}, v4")
c0 = -2.0 * (2.0/3.141592653589793)**0.5 * 1.4426950408889634
CC0, CC1, CONE = 156, 158, 160
for r in (CC0, CC0+1): I(f"v_mov_b32 {v(r)}, {hex(f2u(c0))}")
for r in (CC1, CC1+1): I(f"v_mov_b32 {v(r)}, {hex(f2u(c0*0.044715))}")
for r in (CONE, CONE+1): I(f"v_mov_b32 {v(r)}, 1.0")
W1F, YB, DB, TT, SSQ, HR = 16, 40, 64, 80, 96, 104
for j in range(8): I(f"v_mov_b32 {v(SSQ+j)}, 0")
I("v_lshlrev_b32 v9, 4, v0")
I("s_waitcnt vmcnt(0) lgkmcnt(0)")
I("s_barrier")
stamp()
def yread(p):
    out = []
    for sI in range(3):
        o = yoff(p) + sI*1024
        base, o = ("v7", o) if o < 60000 else ("v8", o - YB1)
        out.append(f"ds_read_b128 {v(YB+12*(p%2)+4*sI,4)}, {base} offset:{o}")
    return out
for T in range(2):
    for sI in range(3):
        for t in range(2):
            I(f"ds_read_b64_tr_b16 {v(W1F+12*T+4*sI+2*t,2)}, {'v5' if T==0 else 'v6'} offset:{(32*sI+4*t)*768}")
for x in yread(0) + yread(1): I(x)
I("s_waitcnt lgkmcnt(6)")
I("s_barrier")
dma(SW2, "v9")
def mfmas(p):
    out = []
    for sI in range(3):
        for T in range(2):
            d = DB + 8*(p%2) + 4*T
            out.append(f"v_mfma_f32_16x16x32_bf16 {v(d,4)}, {v(W1F+12*T+4*sI,4)}, {v(YB+12*(p%2)+4*sI,4)}, {v(d,4) if sI else '0'}")
    return out
def gelu(p):
    X = DB + 8*(p%2); T = TT + 8*(p%2); o = []
    P = range(4)
    o += [f"v_pk_mul_f32 {v(T+2*j,2)}, {v(X+2*j,2)}, {v(X+2*j,2)}" for j in P]
    o += [f"v_pk_fma_f32 {v(T+2*j,2)}, {v(T+2*j,2)}, {v(CC1,2)}, {v(CC0,2)}" for j in P]
    o += [f"v_pk_mul_f32 {v(T+2*j,2)}, {v(X+2*j,2)}, {v(T+2*j,2)}" for j in P]
    o += [f"v_exp_f32 {v(T+j)}, {v(T+j)}" for j in range(8)]
    o += [f"v_pk_add_f32 {v(T+2*j,2)}, {v(T+2*j,2)}, {v(CONE,2)}" for j in P]
    o += [f"v_rcp_f32 {v(T+j)}, {v(T+j)}" for j in range(8)]
    o += [f"v_pk_mul_f32 {v(T+2*j,2)}, {v(X+2*j,2)}, {v(T+2*j,2)}" for j in P]
    o += [f"v_pk_fma_f32 {v(SSQ+2*j,2)}, {v(T+2*j,2)}, {v(T+2*j,2)}, {v(SSQ+2*j,2)}" for j in P]
    o += [f"v_cvt_pk_bf16_f32 {v(HR+4*p+j)}, {v(T+2*j)}, {v(T+2*j+1)}" for j in P]
    return o
I("s_waitcnt lgkmcnt(3)")
for x in mfmas(0): I(x)
I("s_nop 7")
for p in range(13):
    g = gelu(p)
    if p < 12:
        I("s_waitcnt lgkmcnt(0)")
        m = mfmas(p+1)
        pos = [2, 6, 10, 14, 18, 22]
        for idx, x in enumerate(g):
            if idx in pos: I(m[pos.index(idx)])
            if idx == 24 and p + 2 <= 12:
                for y in yread(p+2): I(y)
            I(x)
    else:
        for x in g: I(x)
    if p == 6:
        I("s_waitcnt vmcnt(0)")
        I("s_barrier")
stamp()
for sh in (8, 4, 2, 1):
    for j in range(8):
        I(f"v_add_f32_dpp {v(SSQ+j)}, {v(SSQ+j)}, {v(SSQ+j)} row_ror:{sh} row_mask:0xf bank_mask:0xf")
for j in range(8): I(f"v_or_b32 {v(SSQ+j)}, {s(S_OOB)}, {v(SSQ+j)}")
I(f"s_mul_i32 {s(S_T0)}, s2, 1536")
I(f"s_lshl_b32 {s(S_T1)}, {s(S_WAVE)}, 7")
I(f"s_add_u32 {s(S_T0)}, {s(S_T0)}, {s(S_T1)}")
I("v_lshlrev_b32 v5, 4, v3")
I("s_mov_b32 exec_lo, 0x00010001"); I("s_mov_b32 exec_hi, 0x00010001")
I(f"buffer_store_dwordx4 {v(SSQ,4)}, v5, {s(SWS,4)}, {s(S_T0)} offen sc1")
I(f"buffer_store_dwordx4 {v(SSQ+4,4)}, v5, {s(SWS,4)}, {s(S_T0)} offen offset:64 sc1")
I("s_mov_b64 exec, -1")
WP = 16
I("v_bfe_u32 v5, v1, 2, 2")
I("v_lshl_add_u32 v5, v3, 2, v5")
I("v_mul_u32_u24 v5, 192, v5")
I("v_and_b32 v6, 3, v1")
I("v_lshl_add_u32 v5, v6, 3, v5")
I(f"s_lshl_b32 {s(S_T0)}, {s(S_G6)}, 5")
I(f"v_add_u32 v5, {s(S_T0)}, v5")
I(f"v_add_u32 v6, {6*6144}, v5")
for ks in range(12):
    for t in range(2):
        I(f"ds_read_b64_tr_b16 {v(WP+4*ks+2*t,2)}, {'v5' if ks<6 else 'v6'} offset:{(ks%6)*6144+t*3072}")
I(f"s_lshl_b32 {s(S_T0)}, {s(S_WAVE)}, 10")
I(f"v_add_u32 v5, {s(S_T0)}, v4")
I(f"v_add_u32 v6, {5*12288}, v5")
I(f"v_add_u32 v7, {10*12288}, v5")
I("v_lshl_add_u32 v8, v3, 2, v2")
I("v_lshlrev_b32 v8, 4, v8")
I(f"s_lshl_b32 {s(S_T0)}, {s(S_WAVE)}, 8")
I(f"s_add_u32 {s(S_T0)}, {s(S_T0)}, {HLEFT}")
I(f"v_add_u32 v8, {s(S_T0)}, v8")
I("s_waitcnt lgkmcnt(0)")
I("s_barrier")
for p in range(12):
    I(f"ds_write_b128 {v(5+p//5)}, {v(HR+4*p,4)} offset:{(p%5)*12288}")
I("s_mov_b32 exec_lo, 0x000f000f"); I("s_mov_b32 exec_hi, 0x000f000f")
I(f"ds_write_b128 v8, {v(HR+48,4)}")
I("s_mov_b64 exec, -1")
SPIN = 1 << 17
def spin_tail(lbl):
    I(f"s_sub_u32 {s(S_CNT)}, {s(S_CNT)}, 1")
    I(f"s_cmp_eq_u32 {s(S_CNT)}, 0")
    I(f"s_cbranch_scc0 {lbl}")
def wavesum(regs, t):
    for sh in (8, 4, 2, 1):
        for r in regs: I(f"v_add_f32_dpp {v(r)}, {v(r)}, {v(r)} row_ror:{sh} row_mask:0xf bank_mask:0xf")
        if len(regs) < 3: I("s_nop 1")
    for op in ("v_permlane16_swap_b32", "v_permlane32_swap_b32"):
        for k, r in enumerate(regs): I(f"v_mov_b32 {v(t+k)}, {v(r)}")
        I("s_nop 1")
        for k, r in enumerate(regs): I(f"{op} {v(r)}, {v(t+k)}")
        I("s_nop 1")
        for k, r in enumerate(regs): I(f"v_add_f32 {v(r)}, {v(r)}, {v(t+k)}")
C("wave 0: wait until every WG has cleared its slots, then (WG<96) reduce 4 channels over all WGs")
I(f"s_cmp_eq_u32 {s(S_WAVE)}, 0")
I("s_cbranch_scc0 L_nored")
I(f"s_mov_b32 {s(S_CNT)}, {SPIN}")
I("v_mov_b32 v9, 0")
LBL("L_p0")
I(f"buffer_load_dword v10, v9, {s(SD,4)}, 0 offen sc1")
I("s_waitcnt vmcnt(0)")
I(f"v_readfirstlane_b32 {s(S_T0)}, v10")
I(f"s_cmp_ge_u32 {s(S_T0)}, 256")
I("s_cbranch_scc1 L_p0d")
spin_tail("L_p0")
LBL("L_p0d")
I("s_cmp_ge_u32 s2, 96")
I("s_cbranch_scc1 L_nored")
I("v_mul_u32_u24 v9, 1536, v1")
I(f"s_lshl_b32 {s(S_T0)}, s2, 4")
I(f"v_add_u32 v9, {s(S_T0)}, v9")
I(f"s_mov_b32 {s(S_T1)}, {64*1536}"); I(f"s_mov_b32 {s(S_T2)}, {128*1536}"); I(f"s_mov_b32 {s(S_T3)}, {192*1536}")
I(f"s_mov_b32 {s(S_CNT)}, {SPIN}")
LBL("L_p1")
for q, so in enumerate(["0", s(S_T1), s(S_T2), s(S_T3)]):
    I(f"buffer_load_dwordx4 {v(64+4*q,4)}, v9, {s(SWS,4)}, {so} offen sc1")
I("s_waitcnt vmcnt(0)")
I("v_and_b32 v80, v64, v65")
for j in range(2, 16): I(f"v_and_b32 v80, v80, {v(64+j)}")
I("v_cmp_gt_i32 vcc, 0, v80")
I("s_nop 1")
I("s_cmp_eq_u64 vcc, -1")
I("s_cbranch_scc1 L_p1d")
spin_tail("L_p1")
LBL("L_p1d")
for j in range(4):
    I(f"v_add_f32 {v(64+j)}, abs({v(64+j)}), abs({v(68+j)})")
    I(f"v_add_f32 {v(72+j)}, abs({v(72+j)}), abs({v(76+j)})")
for j in range(4): I(f"v_add_f32 {v(64+j)}, {v(64+j)}, {v(72+j)}")
I("s_nop 1")
wavesum([64, 65, 66, 67], 68)
for j in range(4): I(f"v_or_b32 {v(64+j)}, {s(S_OOB)}, {v(64+j)}")
I(f"s_add_u32 {s(S_T0)}, {s(S_T0)}, {PART_BYTES}")
I("v_mov_b32 v9, 0")
I("s_mov_b64 exec, 1")
I(f"buffer_store_dwordx4 v[64:67], v9, {s(SWS,4)}, {s(S_T0)} offen sc1")
I("s_mov_b64 exec, -1")
LBL("L_nored")
stamp()
C("bias = beta @ W2 (MFMA, beta broadcast over columns)")
I(f"v_lshlrev_b32 v5, 3, v3")
I(f"v_add_u32 v5, {BOFF}, v5")
I("s_waitcnt vmcnt(0) lgkmcnt(0)")
for ks in range(12):
    I(f"ds_read2_b64 {v(64+4*ks,4)}, v5 offset0:{8*ks} offset1:{8*ks+4}")
BIAS = 160
VO = 2
I(f"s_mul_i32 {s(S_T0)}, {s(S_HH)}, 112")
I(f"s_lshl_b32 {s(S_T1)}, {s(S_G6)}, 5")
I(f"v_lshl_add_u32 v12, v3, 3, {s(S_T1)}")
I(f"s_mul_i32 {s(S_T1)}, {s(S_Y0)}, 224")
I(f"s_add_u32 {s(S_T1)}, {s(S_T1)}, {s(S_X0)}")
I(f"s_movk_i32 {s(S_T2)}, 196")
I(f"v_mov_b32 v13, {s(S_OOB)}")
for q in range(7):
    I(f"v_add_u32 v9, {s(S_T0)}, v2")
    I(f"v_add_u32 v9, {16*q}, v9")
    I("v_mul_u32_u24 v10, 4682, v9")
    I("v_lshrrev_b32 v10, 16, v10")
    I("v_mul_u32_u24 v10, 210, v10")
    I(f"v_add3_u32 v10, v10, v9, {s(S_T1)}")
    I("v_mul_u32_u24 v10, 192, v10")
    I(f"v_cmp_gt_u32 vcc, {s(S_T2)}, v9")
    I("v_add_u32 v10, v10, v12")
    I("s_nop 0")
    I(f"v_cndmask_b32 {v(112+q)}, v13, v10, vcc")
I(f"s_mul_i32 {s(S_T0)}, {s(S_HH)}, {7*12288}")
I(f"v_add_u32 v9, {s(S_T0)}, v4")
I(f"v_add_u32 v10, {4*12288}, v9")
I("v_min_u32 v11, 3, v2")
I("v_lshl_add_u32 v11, v3, 2, v11")
I("v_lshlrev_b32 v11, 4, v11")
I(f"v_add_u32 v11, {HLEFT}, v11")
I("v_min_u32 v12, 11, v2")
I("v_lshlrev_b32 v12, 7, v12")
I("v_lshl_add_u32 v12, v3, 4, v12")
I(f"v_add_u32 v12, {SOFF}, v12")
for q in range(7): I(f"v_mov_b32 {v(VO+q)}, {v(112+q)}")
I("s_waitcnt lgkmcnt(0)")
for ks in range(12):
    I(f"v_mfma_f32_16x16x32_bf16 {v(BIAS,4)}, {v(WP+4*ks,4)}, {v(64+4*ks,4)}, {v(BIAS,4) if ks else '0'}")
F = 64
I(f"s_mov_b32 {s(S_T3)}, 0xffff0000")
I("s_nop 7")
for ks in range(12):
    for j in range(4):
        I(f"v_lshlrev_b32 {v(F+8*ks+2*j)}, 16, {v(WP+4*ks+j)}")
        I(f"v_and_b32 {v(F+8*ks+2*j+1)}, {s(S_T3)}, {v(WP+4*ks+j)}")
ACC, RING = 16, 44
for q in range(7):
    I(f"buffer_load_dwordx2 {v(RING+2*q,2)}, {v(VO+q)}, {s(SX,4)}, 0 offen")
I(f"s_cmp_eq_u32 {s(S_WAVE)}, 0")
I("s_cbranch_scc0 L_ng")
I("v_lshlrev_b32 v13, 3, v1")
I("v_lshlrev_b32 v14, 2, v1")
I(f"buffer_load_dwordx2 v[58:59], v13, {s(SG,4)}, 0 offen")
I(f"buffer_load_dword v60, v14, {s(SG,4)}, 0 offen offset:512")
LBL("L_ng")
I("s_waitcnt vmcnt(0)")
for q in range(7):
    for j in range(2):
        I(f"v_lshlrev_b32 {v(ACC+4*q+2*j)}, 16, {v(RING+2*q+j)}")
        I(f"v_and_b32 {v(ACC+4*q+2*j+1)}, {s(S_T3)}, {v(RING+2*q+j)}")
    for j in range(2):
        I(f"v_pk_add_f32 {v(ACC+4*q+2*j,2)}, {v(ACC+4*q+2*j,2)}, {v(BIAS+2*j,2)}")
stamp()
C("wave 0: wait for the 384 totals, compute the GRN scale")
I(f"s_cmp_eq_u32 {s(S_WAVE)}, 0")
I("s_cbranch_scc0 L_nos")
I("v_lshlrev_b32 v14, 4, v1")
I(f"s_mov_b32 {s(S_T0)}, {PART_BYTES}")
I(f"s_mov_b32 {s(S_CNT)}, {SPIN}")
LBL("L_p2")
I(f"buffer_load_dwordx4 v[44:47], v14, {s(SWS,4)}, {s(S_T0)} offen sc1")
I(f"buffer_load_dwordx2 v[48:49], v13, {s(SWS,4)}, {s(S_T0)} offen offset:1024 sc1")
I("s_waitcnt vmcnt(0)")
I("v_and_b32 v50, v44, v45")
for j in range(2, 6): I(f"v_and_b32 v50, v50, {v(44+j)}")
I("v_cmp_gt_i32 vcc, 0, v50")
I("s_nop 1")
I("s_cmp_eq_u64 vcc, -1")
I("s_cbranch_scc1 L_p2d")
spin_tail("L_p2")
LBL("L_p2d")
I(f"v_mov_b32 v50, {hex(f2u(1e-6))}")
for j in range(6): I(f"v_add_f32 {v(44+j)}, abs({v(44+j)}), v50")
for j in range(6): I(f"v_sqrt_f32 {v(44+j)}, {v(44+j)}")
I("s_nop 0")
I("v_add_f32 v51, v44, v45"); I("v_add_f32 v52, v46, v47"); I("v_add_f32 v53, v48, v49")
I("v_add_f32 v51, v51, v52"); I("v_add_f32 v51, v51, v53")
I("s_nop 1")
wavesum([51], 52)
I(f"v_mov_b32 v52, {hex(f2u(1.0/384))}")
I("v_fma_f32 v51, v51, v52, v50")
I("v_rcp_f32 v51, v51")
for j in range(3):
    I(f"v_lshlrev_b32 {v(52+2*j)}, 16, {v(58+j)}")
    I(f"v_and_b32 {v(53+2*j)}, {s(S_T3)}, {v(58+j)}")
for j in range(6): I(f"v_mul_f32 {v(44+j)}, {v(44+j)}, v51")
for j in range(6): I(f"v_fma_f32 {v(44+j)}, {v(44+j)}, {v(52+j)}, 1.0")
I(f"v_add_u32 v14, {SOFF}, v14")
I(f"v_add_u32 v13, {SOFF+1024}, v13")
I("ds_write_b128 v14, v[44:47]")
I("ds_write_b64 v13, v[48:49]")
LBL("L_nos")
I("s_waitcnt lgkmcnt(0)")
I("s_barrier")
stamp()
SR = 160
NR = 5
def gemm2(half):
    nt = 7 if half == 0 else 6
    def rd(idx):
        ks, q = divmod(idx, nt)
        dst = v(RING + 4*(idx % NR), 4)
        if half == 1 and q == 5: return f"ds_read_b128 {dst}, v11 offset:{ks*256}"
        return f"ds_read_b128 {dst}, {'v9' if q < 4 else 'v10'} offset:{(q%4)*12288+ks*1024}"
    def scale(ks):
        o = [f"v_mul_f32_dpp {v(F+8*ks+j)}, {v(SR+j)}, {v(F+8*ks+j)} row_newbcast:{ks} row_mask:0xf bank_mask:0xf" for j in range(8)]
        o += [f"v_cvt_pk_bf16_f32 {v(F+8*ks+j)}, {v(F+8*ks+2*j)}, {v(F+8*ks+2*j+1)}" for j in range(4)]
        return o
    I(f"ds_read_b128 {v(SR,4)}, v12")
    I(f"ds_read_b128 {v(SR+4,4)}, v12 offset:64")
    for idx in range(NR): I(rd(idx))
    I(f"s_waitcnt lgkmcnt({NR})")
    for x in scale(0): I(x)
    I("s_nop 1")
    tot = 12 * nt
    for ks in range(12):
        sc = scale(ks+1) if ks < 11 else []
        for q in range(nt):
            idx = ks*nt + q
            I(f"s_waitcnt lgkmcnt({min(NR-1, tot-1-idx)})")
            I(f"v_mfma_f32_16x16x32_bf16 {v(ACC+4*q,4)}, {v(F+8*ks,4)}, {v(RING+4*(idx%NR),4)}, {v(ACC+4*q,4)}")
            if idx + NR < tot: I(rd(idx+NR))
            if q < 5:
                n = [3, 3, 2, 2, 2][q]
                for x in sc[:n]: I(x)
                sc = sc[n:]
    I("s_nop 7")
    for q in range(nt):
        I(f"v_cvt_pk_bf16_f32 {v(RING+2*q)}, {v(ACC+4*q)}, {v(ACC+4*q+1)}")
        I(f"v_cvt_pk_bf16_f32 {v(RING+2*q+1)}, {v(ACC+4*q+2)}, {v(ACC+4*q+3)}")
        I(f"buffer_store_dwordx2 {v(RING+2*q,2)}, {v(VO+q)}, {s(SO,4)}, 0 offen")
I(f"s_cmp_eq_u32 {s(S_HH)}, 0")
I("s_cbranch_scc0 L_g2b")
gemm2(0)
I("s_branch L_fin")
LBL("L_g2b")
gemm2(1)
LBL("L_fin")
if STAMP:
    I("s_waitcnt vmcnt(0)")
    stamp()
    C("diagnostic build only: wave STAMP-1 of each WG writes its stamps to ws + 1 MiB")
    I(f"s_cmp_eq_u32 {s(S_WAVE)}, {STAMP-1}")
    I("s_cbranch_scc0 L_end")
    I("s_waitcnt lgkmcnt(0)")
    I(f"s_mov_b32 {s(SWS+2)}, 0x200000")
    I(f"s_lshl_b32 {s(S_T0)}, s2, 6")
    I(f"s_add_u32 {s(S_T0)}, {s(S_T0)}, 0x100000")
    I("v_mov_b32 v1, 0")
    for k in range(nstamp[0]):
        I(f"v_mov_b32 v2, {s(S_ST+2*k)}")
        I(f"buffer_store_dword v2, v1, {s(SWS,4)}, {s(S_T0)} offen offset:{4*k}")
LBL("L_end")
I("s_endpgm")
L += ['.section .rodata,"a"', ".p2align 6", f".amdhsa_kernel {NAME}_kernel",
      "  .amdhsa_next_free_vgpr 168", "  .amdhsa_next_free_sgpr 102", "  .amdhsa_accum_offset 168",
      "  .amdhsa_group_segment_fixed_size 0", "  .amdhsa_kernarg_size 72", "  .amdhsa_user_sgpr_count 2",
      "  .amdhsa_user_sgpr_kernarg_segment_ptr 1", "  .amdhsa_system_sgpr_workgroup_id_x 1", ".end_amdhsa_kernel"]
open(sys.argv[1], "w").write("\n".join(L) + "\n")
```

```python
import sys, struct
NAME = "standalone__modern_conv_block_convnext_v2__vision"
OPT = dict(a.split("=") for a in sys.argv[2:]) if len(sys.argv) > 2 else {}
STAMP = int(OPT.get("stamp", 0))
L = []
def I(s): L.append("    " + s)
def LBL(s): L.append(s + ":")
def C(s): L.append("    ; " + s)
def f2u(f): return struct.unpack("<I", struct.pack("<f", f))[0]
def v(a, n=1): return f"v{a}" if n == 1 else f"v[{a}:{a+n-1}]"
def s(a, n=1): return f"s{a}" if n == 1 else f"s[{a}:{a+n-1}]"

CS, OS = 808, 6480
R2 = 77888
RS, PS = 5616, 400
MISC = 158208
SOFF, BOFF = MISC, MISC + 1536
ROFF = BOFF + 768
LDS = ROFF + 1024
HLEFT = 147456
PART_BYTES = 256 * 1536
WS_BYTES = PART_BYTES + 1536
XB = 224 * 224 * 96 * 2
SX, SDW, SW1, SW2, SG, SB, SO, SD, SWS = 4, 8, 12, 16, 20, 24, 28, 32, 36
S_WAVE, S_Y0, S_X0, S_T0, S_T1, S_T2, S_T3 = 40, 41, 42, 43, 44, 45, 46
S_OOB, S_SELLO, S_SELHI = 47, 66, 67
S_K = 68
S_EX = 74
S_CNT = 76
S_G6, S_HH = 77, 78
S_ST = 80
C0 = 2.0 * (2.0/3.141592653589793)**0.5 * 1.4426950408889634
AS = (C0*0.044715)**(1.0/3)
MPOS = [int(x) for x in OPT.get("mpos", "8,9,10,20,21,22").split(",")]
nstamp = [0]
def stamp():
    if STAMP:
        I(f"s_memtime {s(S_ST + 2*nstamp[0], 2)}")
        nstamp[0] += 1
def yoff(p): return (16*p // 14) * RS + (16*p % 14) * PS

hdr = open("cdna_kernels/" + NAME + ".s.ref").read().split("\n")
for ln in hdr:
    if ln.startswith("; @launch"):
        L.append(f"; @launch grid=(256,1,1) block=(768,1,1) lds={LDS}")
    elif ln.startswith(";"):
        L.append(ln)
    else:
        break
L += ['.amdgcn_target "amdgcn-amd-amdhsa--gfx950"', ".text", f".globl {NAME}_kernel", ".p2align 8",
      f".type {NAME}_kernel,@function", f"{NAME}_kernel:"]

I("s_cmp_ge_u32 s2, 256")
I("s_cbranch_scc1 L_end")
I("s_load_dwordx16 s[48:63], s[0:1], 0")
I("s_load_dwordx2 s[64:65], s[0:1], 64")
if STAMP: I("s_memrealtime s[100:101]")
stamp()
I("v_lshrrev_b32 v2, 6, v0")
I("v_and_b32 v1, 63, v0")
I(f"v_readfirstlane_b32 {s(S_WAVE)}, v2")
C("tile coords: xcd-local 4x8 blocks of tiles (speed only)")
I(f"s_and_b32 {s(S_T0)}, s2, 7")
I(f"s_lshr_b32 {s(S_T1)}, s2, 3")
I(f"s_lshr_b32 {s(S_T2)}, {s(S_T0)}, 1")
I(f"s_lshl_b32 {s(S_T2)}, {s(S_T2)}, 2")
I(f"s_lshr_b32 {s(S_T3)}, {s(S_T1)}, 3")
I(f"s_add_u32 {s(S_T2)}, {s(S_T2)}, {s(S_T3)}")
I(f"s_mul_i32 {s(S_Y0)}, {s(S_T2)}, 14")
I(f"s_and_b32 {s(S_T2)}, {s(S_T0)}, 1")
I(f"s_lshl_b32 {s(S_T2)}, {s(S_T2)}, 3")
I(f"s_and_b32 {s(S_T3)}, {s(S_T1)}, 7")
I(f"s_add_u32 {s(S_T2)}, {s(S_T2)}, {s(S_T3)}")
I(f"s_mul_i32 {s(S_X0)}, {s(S_T2)}, 14")
I(f"s_mov_b32 {s(S_OOB)}, 0x80000000")
I(f"s_mov_b32 {s(S_SELLO)}, 0x05040100")
I(f"s_mov_b32 {s(S_SELHI)}, 0x07060302")
for k in range(6): I(f"s_mov_b32 {s(S_K+k)}, {12288*k}")
I(f"s_cmp_ge_u32 {s(S_WAVE)}, 6")
I(f"s_cselect_b32 {s(S_HH)}, 1, 0")
I(f"s_mul_i32 {s(S_T0)}, {s(S_HH)}, 6")
I(f"s_sub_u32 {s(S_G6)}, {s(S_WAVE)}, {s(S_T0)}")
I(f"s_sub_u32 {s(S_T0)}, {s(S_Y0)}, 3")
I(f"s_sub_u32 {s(S_T1)}, {s(S_X0)}, 3")
I(f"s_movk_i32 {s(S_T2)}, 224")
I(f"s_movk_i32 {s(S_T3)}, 192")
for k in range(2):
    I(f"v_add_u32 v3, {768*k}, v0")
    I("v_mul_u32_u24 v4, 43691, v3")
    I("v_lshrrev_b32 v4, 19, v4")
    I("v_mul_u32_u24 v5, 12, v4")
    I("v_sub_u32 v5, v3, v5")
    I("v_mul_u32_u24 v6, 205, v4")
    I("v_lshrrev_b32 v6, 10, v6")
    I("v_mul_u32_u24 v7, 5, v6")
    I("v_sub_u32 v7, v4, v7")
    I(f"v_mul_u32_u24 v8, {OS}, v5")
    I("v_mul_u32_u24 v9, 40, v6")
    I("v_lshl_add_u32 v9, v7, 3, v9")
    I(f"v_add_u32 {v(64+k)}, v8, v9")
    I(f"v_add_u32 v6, {s(S_T0)}, v6")
    I("v_lshlrev_b32 v7, 2, v7")
    I(f"v_add_u32 v7, {s(S_T1)}, v7")
    I(f"v_mul_lo_u32 v8, v6, {s(S_T2)}")
    I("v_add_u32 v8, v8, v7")
    I(f"v_mul_lo_u32 v8, v8, {s(S_T3)}")
    I("v_lshl_add_u32 v8, v5, 4, v8")
    I(f"v_cmp_gt_u32 s[90:91], {s(S_T2)}, v6")
    if k == 1:
        I("v_cmp_gt_u32 vcc, 1200, v3")
        I("s_nop 1")
        I("s_and_b64 s[90:91], s[90:91], vcc")
    I(f"v_mov_b32 v10, {s(S_OOB)}")
    for i in range(4):
        I(f"v_add_u32 v9, {i}, v7")
        I(f"v_cmp_gt_u32 vcc, {s(S_T2)}, v9")
        I(f"v_add_u32 v11, {192*i}, v8")
        I("s_and_b64 vcc, vcc, s[90:91]")
        I("s_nop 1")
        I(f"v_cndmask_b32 {v(56+4*k+i)}, v10, v11, vcc")
I("v_mul_u32_u24 v3, 683, v0")
I("v_lshrrev_b32 v3, 16, v3")
I("v_mul_u32_u24 v4, 96, v3")
I("v_sub_u32 v4, v0, v4")
I("v_mul_u32_u24 v5, 1344, v3")
I("v_lshl_add_u32 v5, v4, 1, v5")
I("v_mul_u32_u24 v6, 7, v4")
I("v_add_u32 v6, v6, v3")
I("v_mul_u32_u24 v6, 48, v6")
I(f"v_add_u32 v66, {R2}, v6")
I("s_waitcnt lgkmcnt(0)")
def srd(d, b, n):
    I(f"s_mov_b32 {s(d)}, {s(b)}"); I(f"s_and_b32 {s(d+1)}, {s(b+1)}, 0xffff")
    I(f"s_mov_b32 {s(d+2)}, {n}"); I(f"s_mov_b32 {s(d+3)}, 0x00020000")
srd(SDW, 50, 7*7*96*2); srd(SX, 48, XB)
srd(SWS, 64, WS_BYTES); srd(SB, 58, 768)
C("wave 10: zero this WG's hand-off slots; wave 11: stage beta")
I(f"s_cmp_eq_u32 {s(S_WAVE)}, 10")
I("s_cbranch_scc0 L_nz")
I("v_mov_b32 v12, 0"); I("v_mov_b32 v13, 0"); I("v_mov_b32 v14, 0"); I("v_mov_b32 v15, 0")
I(f"s_mul_i32 {s(S_T0)}, s2, 1536")
I("v_lshlrev_b32 v7, 4, v1")
I(f"buffer_store_dwordx4 v[12:15], v7, {s(SWS,4)}, {s(S_T0)} offen sc1")
I(f"s_lshl_b32 {s(S_T1)}, s2, 4")
I(f"s_add_u32 {s(S_T1)}, {s(S_T1)}, {PART_BYTES}")
I(f"s_add_u32 {s(S_T0)}, {s(S_T0)}, 1024")
I(f"v_add_u32 v8, {s(S_T0)}, v7")
I(f"v_mov_b32 v9, {s(S_T1)}")
I(f"v_mov_b32 v10, {s(S_OOB)}")
I("v_cmp_eq_u32 vcc, 32, v1")
I("s_nop 1")
I("v_cndmask_b32 v9, v10, v9, vcc")
I("v_cmp_gt_u32 vcc, 32, v1")
I("s_nop 1")
I("v_cndmask_b32 v8, v9, v8, vcc")
I(f"buffer_store_dwordx4 v[12:15], v8, {s(SWS,4)}, 0 offen sc1")
LBL("L_nz")
I(f"s_cmp_eq_u32 {s(S_WAVE)}, 11")
I("s_cbranch_scc0 L_nb")
I("v_lshlrev_b32 v7, 4, v1")
I(f"buffer_load_dwordx4 v[12:15], v7, {s(SB,4)}, 0 offen")
LBL("L_nb")
for j in range(7):
    I(f"buffer_load_ushort {v(48+j)}, v5, {s(SDW,4)}, 0 offen offset:{192*j}")
for k in range(2):
    for i in range(4):
        I(f"buffer_load_dwordx4 {v(16+16*k+4*i,4)}, {v(56+4*k+i)}, {s(SX,4)}, 0 offen")
srd(SW1, 52, 96*384*2); srd(SW2, 54, 96*384*2); srd(SG, 56, 768); srd(SO, 60, XB); srd(SD, 62, 256)
I("s_waitcnt vmcnt(8)")
I(f"s_cmp_eq_u32 {s(S_WAVE)}, 11")
I("s_cbranch_scc1 L_beta")
C("build Toeplitz source table [0,R0,R1,R2][R3,0,0,O0][O1,O2,O3,0]")
I("v_mov_b32 v68, 0")
I("v_lshl_or_b32 v69, v49, 16, v48")
I("v_lshl_or_b32 v70, v51, 16, v50")
I("v_lshl_or_b32 v71, v53, 16, v52")
I("v_mov_b32 v72, v54"); I("v_mov_b32 v73, 0"); I("v_mov_b32 v74, 0")
I("v_lshlrev_b32 v75, 16, v48")
I("v_lshl_or_b32 v76, v50, 16, v49")
I("v_lshl_or_b32 v77, v52, 16, v51")
I("v_lshl_or_b32 v78, v54, 16, v53")
I("v_mov_b32 v79, 0")
I("v_cmp_gt_u32 vcc, 673, v0")
I(f"s_and_saveexec_b64 {s(S_EX,2)}, vcc")
I(f"v_mov_b32 v7, {R2 + 672*48}")
I("v_cmp_eq_u32 vcc, 672, v0")
I("s_nop 1")
I("v_cndmask_b32 v66, v66, v7, vcc")
I("ds_write_b128 v66, v[68:71]")
I("ds_write_b128 v66, v[72:75] offset:16")
I("ds_write_b128 v66, v[76:79] offset:32")
I(f"s_mov_b64 exec, {s(S_EX,2)}")
I("s_branch L_xw")
LBL("L_beta")
I("v_cmp_gt_u32 vcc, 48, v1")
I(f"s_and_saveexec_b64 {s(S_EX,2)}, vcc")
I(f"v_add_u32 v7, {BOFF}, v7")
I("ds_write_b128 v7, v[12:15]")
I(f"s_mov_b64 exec, {s(S_EX,2)}")
LBL("L_xw")
def xpose(k):
    b = 16 + 16*k
    for d in range(4):
        for hf, sel in ((0, S_SELLO), (1, S_SELHI)):
            t = 80 + 2*(2*d+hf)
            I(f"v_perm_b32 {v(t)}, {v(b+4+d)}, {v(b+d)}, {s(sel)}")
            I(f"v_perm_b32 {v(t+1)}, {v(b+12+d)}, {v(b+8+d)}, {s(sel)}")
    for c in range(8):
        I(f"ds_write_b64 {v(64+k)}, {v(80+2*c,2)} offset:{c*CS}")
I("s_waitcnt vmcnt(4)")
xpose(0)
I("s_waitcnt vmcnt(0)")
I(f"s_cmp_ge_u32 {s(S_WAVE)}, 7")
I("s_cbranch_scc1 L_x1skip")
I("v_cmp_gt_u32 vcc, 432, v0")
I(f"s_and_saveexec_b64 {s(S_EX,2)}, vcc")
I("s_waitcnt lgkmcnt(0)")
xpose(1)
I(f"s_mov_b64 exec, {s(S_EX,2)}")
LBL("L_x1skip")
I(f"s_cmp_eq_u32 {s(S_WAVE)}, 10")
I("s_cbranch_scc0 L_ncnt")
I("v_mov_b32 v7, 0"); I("v_mov_b32 v8, 1")
I("s_mov_b64 exec, 1")
I(f"buffer_atomic_add v8, v7, {s(SD,4)}, 0 offen")
I("s_mov_b64 exec, -1")
LBL("L_ncnt")
I("v_lshrrev_b32 v2, 2, v1")
I("v_and_b32 v3, 3, v1")
I(f"s_lshl_b32 {s(S_T0)}, {s(S_G6)}, 4")
I(f"v_add_u32 v4, {s(S_T0)}, v2")
I("v_mul_u32_u24 v5, 336, v4")
I("v_and_b32 v6, 1, v3")
I("v_mul_u32_u24 v6, 24, v6")
I("v_lshrrev_b32 v7, 1, v3")
I("v_xor_b32 v7, 1, v7")
I("v_lshl_add_u32 v6, v7, 2, v6")
I(f"v_add_u32 v6, {R2}, v6")
I("v_add_u32 v5, v5, v6")
I("v_lshrrev_b32 v6, 3, v4")
I(f"v_mul_u32_u24 v6, {OS}, v6")
I("v_and_b32 v7, 7, v4")
I(f"v_mul_u32_u24 v7, {CS}, v7")
I("v_add_u32 v6, v6, v7")
I("v_mul_u32_u24 v7, 160, v3")
I(f"s_mul_i32 {s(S_T1)}, {s(S_HH)}, 80")
I(f"v_add3_u32 v6, v6, v7, {s(S_T1)}")
I(f"v_mul_u32_u24 v7, {4*RS}, v3")
I("v_lshl_add_u32 v7, v4, 2, v7")
I(f"s_mul_i32 {s(S_T1)}, {s(S_HH)}, {2*RS}")
I(f"s_add_u32 {s(S_T1)}, {s(S_T1)}, {R2}")
I(f"v_add_u32 v7, {s(S_T1)}, v7")
I("v_mul_u32_u24 v8, 1366, v0")
I("v_lshrrev_b32 v8, 16, v8")
I("v_mul_u32_u24 v9, 48, v8")
I("v_sub_u32 v9, v0, v9")
I("v_and_b32 v10, 3, v8")
I("v_bfe_u32 v11, v8, 3, 1")
I("v_lshl_or_b32 v10, v11, 2, v10")
I("v_lshlrev_b32 v10, 1, v10")
I("v_xor_b32 v9, v9, v10")
I("v_mul_u32_u24 v8, 768, v8")
I("v_lshl_add_u32 v8, v9, 4, v8")
I("s_waitcnt lgkmcnt(0)")
I("s_barrier")
stamp()
A0, B0, AC = 16, 58, 80
for kb in range(5):
    I(f"ds_read_b64 {v(B0+2*kb,2)}, v6 offset:{kb*8}")
for i in range(7):
    for q in range(3):
        I(f"ds_read2_b32 {v(A0+6*i+2*q,2)}, v5 offset0:{12*i+2*q} offset1:{12*i+2*q+1}")
first = set()
for rr in range(8):
    bb = B0 + 10*(rr % 2)
    if rr < 7:
        nb = B0 + 10*((rr+1) % 2)
        for kb in range(5):
            I(f"ds_read_b64 {v(nb+2*kb,2)}, v6 offset:{(rr+1)*40+kb*8}")
        I("s_waitcnt lgkmcnt(5)")
    else:
        I("s_waitcnt lgkmcnt(0)")
    for kq in range(3):
        for hl in range(2):
            i = rr - hl
            if not (0 <= i <= 6): continue
            for a in range(4):
                kb = a + kq
                if kb > 4: continue
                acc = AC + 16*hl + 4*a
                cin = v(acc, 4) if (hl, a) in first else "0"
                first.add((hl, a))
                I(f"v_mfma_f32_4x4x4_16b_bf16 {v(acc,4)}, {v(A0+6*i+2*kq,2)}, {v(bb+2*kb,2)}, {cin}")
I("s_barrier")
stamp()
def dma(srdreg, voff):
    I(f"s_lshl_b32 {s(S_T0)}, {s(S_WAVE)}, 10")
    for k in range(6):
        I(f"s_add_u32 m0, {s(S_T0)}, {s(S_K+k)}")
        I("s_nop 0")
        I(f"buffer_load_dwordx4 {voff}, {s(srdreg,4)}, {s(S_K+k)} offen lds")
I(f"s_cmp_eq_u32 {s(S_HH)}, 1")
I("s_cbranch_scc0 L_cw")
I("s_mov_b32 exec_lo, 0x77777777")
I("s_mov_b32 exec_hi, 0x77777777")
LBL("L_cw")
for hl in range(2):
    for col in range(14):
        I(f"ds_write_b32 v7, {v(AC+16*hl+col)} offset:{hl*RS+col*PS}")
I("s_mov_b64 exec, -1")
dma(SW1, "v8")
I("v_and_b32 v2, 15, v1")
I("v_lshrrev_b32 v3, 4, v1")
I("v_lshlrev_b32 v4, 4, v1")
def pixaddr(dst, nreg):
    I(f"v_mul_u32_u24 v10, 4682, {nreg}")
    I("v_lshrrev_b32 v10, 16, v10")
    I("v_mul_u32_u24 v11, 14, v10")
    I(f"v_sub_u32 v11, {nreg}, v11")
    I(f"v_mul_u32_u24 v10, {RS}, v10")
    I(f"v_mul_u32_u24 v11, {PS}, v11")
    I(f"v_add_u32 v10, {R2}, v10")
    I("v_lshl_add_u32 v11, v3, 5, v11")
    I(f"v_add_u32 {dst}, v10, v11")
I(f"s_lshl_b32 {s(S_T0)}, {s(S_WAVE)}, 4")
I(f"v_add_u32 v5, {s(S_T0)}, v2")
pixaddr("v5", "v5")
I(f"v_mov_b32 v12, {hex(f2u(-1.0/96))}")
I(f"v_mov_b32 v13, {hex(f2u(1.0/96/AS**2))}")
I(f"v_mov_b32 v14, {hex(f2u(1e-5/AS**2))}")
VO0 = 156
C("residual/out offsets")
I(f"s_mul_i32 {s(S_T1)}, {s(S_Y0)}, 224")
I(f"s_add_u32 {s(S_T1)}, {s(S_T1)}, {s(S_X0)}")
I(f"s_mul_i32 {s(S_T1)}, {s(S_T1)}, 192")
I(f"s_lshl_b32 {s(S_T2)}, {s(S_G6)}, 5")
I(f"s_add_u32 {s(S_T1)}, {s(S_T1)}, {s(S_T2)}")
I(f"v_lshl_add_u32 v15, v3, 3, {s(S_T1)}")
I(f"s_mul_i32 {s(S_T2)}, {s(S_HH)}, 112")
I(f"s_movk_i32 {s(S_T1)}, 210")
I(f"s_movk_i32 {s(S_T3)}, 192")
I(f"v_add_u32 v6, {s(S_T2)}, v2")
for q in range(7):
    if q: I("v_add_u32 v6, 16, v6")
    I("v_mul_u32_u24 v7, 4682, v6")
    I("v_lshrrev_b32 v7, 16, v7")
    I(f"v_mad_u32_u24 v7, v7, {s(S_T1)}, v6")
    I(f"v_mad_u32_u24 {v(VO0+q)}, v7, {s(S_T3)}, v15")
    if q >= 5:
        I(f"v_mov_b32 v7, {s(S_OOB)}")
        I("v_cmp_gt_u32 vcc, 196, v6")
        I("s_nop 1")
        I(f"v_cndmask_b32 {v(VO0+q)}, v7, {v(VO0+q)}, vcc")
I(f"v_readfirstlane_b32 {s(S_T1)}, v5")
I("s_waitcnt lgkmcnt(0)")
I("s_barrier")
stamp()
I(f"s_cmp_eq_u32 {s(S_WAVE)}, 1")
I("s_cbranch_scc0 L_nq")
I("v_mov_b32 v9, 0")
I(f"buffer_load_dword v15, v9, {s(SD,4)}, 0 offen sc1")
LBL("L_nq")
SPIN = 1 << 17
def spin_tail(lbl):
    I(f"s_sub_u32 {s(S_CNT)}, {s(S_CNT)}, 1")
    I(f"s_cmp_eq_u32 {s(S_CNT)}, 0")
    I(f"s_cbranch_scc0 {lbl}")
def poll(lbl, loads, regs, t):
    LBL(lbl)
    for x in loads: I(x)
    I("s_waitcnt vmcnt(0)")
    I(f"v_and_b32 {v(t)}, {v(regs[0])}, {v(regs[1])}")
    for j in regs[2:]: I(f"v_and_b32 {v(t)}, {v(t)}, {v(j)}")
    I(f"v_cmp_le_i32 vcc, 0, {v(t)}")
    I("s_nop 1")
    I("s_mov_b64 exec, vcc")
    I(f"s_cbranch_execz {lbl}d")
    spin_tail(lbl)
    LBL(lbl + "d")
    I("s_mov_b64 exec, -1")
def xgroup(r, t):
    I(f"v_mov_b32 {v(t)}, {v(r)}"); I("s_nop 1")
    I(f"v_permlane16_swap_b32 {v(r)}, {v(t)}"); I("s_nop 1")
    I(f"v_add_f32 {v(r)}, {v(r)}, {v(t)}")
    I(f"v_mov_b32 {v(t)}, {v(r)}"); I("s_nop 1")
    I(f"v_permlane32_swap_b32 {v(r)}, {v(t)}"); I("s_nop 1")
    I(f"v_add_f32 {v(r)}, {v(r)}, {v(t)}")
def LN(left):
    X, T = 16, 40
    for sI in range(3):
        for t in range(2):
            I(f"ds_read_b128 {v(X+8*sI+4*t,4)}, v5 offset:{sI*128+t*16}")
    I(f"v_add_u32 v6, {s(S_T1)}, v4")
    I("s_waitcnt lgkmcnt(0)")
    for j in range(6): I(f"v_pk_add_f32 {v(T+2*j,2)}, {v(X+2*j,2)}, {v(X+12+2*j,2)}")
    for j in range(3): I(f"v_pk_add_f32 {v(T+2*j,2)}, {v(T+2*j,2)}, {v(T+6+2*j,2)}")
    I(f"v_pk_add_f32 {v(T,2)}, {v(T,2)}, {v(T+2,2)}")
    I(f"v_pk_add_f32 {v(T,2)}, {v(T,2)}, {v(T+4,2)}")
    I(f"v_add_f32 {v(T)}, {v(T)}, {v(T+1)}")
    xgroup(T, T+1)
    I(f"v_mul_f32 {v(T)}, {v(T)}, v12")
    I(f"v_mov_b32 {v(T+1)}, {v(T)}")
    for j in range(12): I(f"v_pk_add_f32 {v(X+2*j,2)}, {v(X+2*j,2)}, {v(T,2)}")
    for j in range(4): I(f"v_pk_mul_f32 {v(T+2+2*j,2)}, {v(X+2*j,2)}, {v(X+2*j,2)}")
    for j in range(4, 12): I(f"v_pk_fma_f32 {v(T+2+2*(j%4),2)}, {v(X+2*j,2)}, {v(X+2*j,2)}, {v(T+2+2*(j%4),2)}")
    I(f"v_pk_add_f32 {v(T+2,2)}, {v(T+2,2)}, {v(T+4,2)}")
    I(f"v_pk_add_f32 {v(T+6,2)}, {v(T+6,2)}, {v(T+8,2)}")
    I(f"v_pk_add_f32 {v(T+2,2)}, {v(T+2,2)}, {v(T+6,2)}")
    I(f"v_add_f32 {v(T)}, {v(T+2)}, {v(T+3)}")
    xgroup(T, T+1)
    I(f"v_fma_f32 {v(T)}, {v(T)}, v13, v14")
    I(f"v_rsq_f32 {v(T)}, {v(T)}")
    I("s_nop 0")
    I(f"v_mov_b32 {v(T+1)}, {v(T)}")
    for j in range(12): I(f"v_pk_mul_f32 {v(X+2*j,2)}, {v(X+2*j,2)}, {v(T,2)}")
    for j in range(12): I(f"v_cvt_pk_bf16_f32 {v(T+j)}, {v(X+2*j)}, {v(X+2*j+1)}")
    if left:
        I("v_cmp_gt_u32 vcc, 4, v2"); I("s_nop 1")
        for j in range(12): I(f"v_cndmask_b32 {v(T+j)}, 0, {v(T+j)}, vcc")
    for sI in range(3):
        I(f"ds_write_b128 v6, {v(T+4*sI,4)} offset:{sI*1024}")
LN(False)
I(f"s_cmp_eq_u32 {s(S_WAVE)}, 0")
I("s_cbranch_scc0 L_ln1")
I("v_min_u32 v5, 3, v2")
I("v_add_u32 v5, 192, v5")
pixaddr("v5", "v5")
I(f"s_mov_b32 {s(S_T1)}, {R2 + yoff(12)}")
I("s_waitcnt lgkmcnt(0)")
LN(True)
LBL("L_ln1")
C("wave 1: make sure every WG has cleared its hand-off slots before anything is polled")
I(f"s_cmp_eq_u32 {s(S_WAVE)}, 1")
I("s_cbranch_scc0 L_ln2")
I(f"s_mov_b32 {s(S_CNT)}, {SPIN}")
I("s_branch L_p0b")
LBL("L_p0")
I(f"buffer_load_dword v15, v9, {s(SD,4)}, 0 offen sc1")
LBL("L_p0b")
I("s_waitcnt vmcnt(0)")
I(f"v_readfirstlane_b32 {s(S_T1)}, v15")
I(f"s_cmp_ge_u32 {s(S_T1)}, 256")
I("s_cbranch_scc1 L_ln2")
spin_tail("L_p0")
LBL("L_ln2")
I("v_bfe_u32 v9, v1, 2, 2")
I("v_lshl_add_u32 v10, v3, 3, v9")
I("v_mul_u32_u24 v10, 768, v10")
I("v_and_b32 v11, 3, v1")
I("v_lshl_add_u32 v10, v11, 3, v10")
I("v_and_b32 v11, 1, v3")
I("v_lshl_or_b32 v9, v11, 2, v9")
I(f"s_lshl_b32 {s(S_T0)}, {s(S_WAVE)}, 1")
I(f"v_xor_b32 v11, {s(S_T0)}, v9")
I("v_lshl_add_u32 v5, v11, 5, v10")
I("v_xor_b32 v11, 1, v11")
I("v_lshl_add_u32 v6, v11, 5, v10")
YB1 = 40000
I(f"v_add_u32 v7, {R2}, v4")
I(f"v_add_u32 v8, {R2+YB1}, v4")
c0 = -2.0 * (2.0/3.141592653589793)**0.5 * 1.4426950408889634
CC0, CONE = 164, 166
for r in (CC0, CC0+1): I(f"v_mov_b32 {v(r)}, {hex(f2u(-C0/AS))}")
for r in (CONE, CONE+1): I(f"v_mov_b32 {v(r)}, 1.0")
W1F, YB, DB, TT, SSQ, HR = 16, 40, 64, 80, 96, 104
for j in range(8): I(f"v_mov_b32 {v(SSQ+j)}, 0")
I("v_lshlrev_b32 v9, 4, v0")
I("s_waitcnt vmcnt(0) lgkmcnt(0)")
I("s_barrier")
stamp()
def yread(p):
    out = []
    for sI in range(3):
        o = yoff(p) + sI*1024
        base, o = ("v7", o) if o < 60000 else ("v8", o - YB1)
        out.append(f"ds_read_b128 {v(YB+12*(p%2)+4*sI,4)}, {base} offset:{o}")
    return out
for T in range(2):
    for sI in range(3):
        for t in range(2):
            I(f"ds_read_b64_tr_b16 {v(W1F+12*T+4*sI+2*t,2)}, {'v5' if T==0 else 'v6'} offset:{(32*sI+4*t)*768}")
for x in yread(0) + yread(1): I(x)
I("s_waitcnt lgkmcnt(6)")
I("s_barrier")
dma(SW2, "v9")
def mfmas(p):
    out = []
    for sI in range(3):
        for T in range(2):
            d = DB + 8*(p%2) + 4*T
            out.append(f"v_mfma_f32_16x16x32_bf16 {v(d,4)}, {v(W1F+12*T+4*sI,4)}, {v(YB+12*(p%2)+4*sI,4)}, {v(d,4) if sI else '0'}")
    return out
def gelu(p):
    X = DB + 8*(p%2); T = TT + 8*(p%2); o = []
    P = range(4)
    o += [f"v_pk_fma_f32 {v(T+2*j,2)}, {v(X+2*j,2)}, {v(X+2*j,2)}, {v(CC0,2)} neg_lo:[1,0,0] neg_hi:[1,0,0]" for j in P]
    o += [f"v_pk_mul_f32 {v(T+2*j,2)}, {v(X+2*j,2)}, {v(T+2*j,2)}" for j in P]
    o += [f"v_exp_f32 {v(T+j)}, {v(T+j)}" for j in range(8)]
    o += [f"v_pk_add_f32 {v(T+2*j,2)}, {v(T+2*j,2)}, {v(CONE,2)}" for j in P]
    o += [f"v_rcp_f32 {v(T+j)}, {v(T+j)}" for j in range(8)]
    o += [f"v_pk_mul_f32 {v(T+2*j,2)}, {v(X+2*j,2)}, {v(T+2*j,2)}" for j in P]
    o += [f"v_pk_fma_f32 {v(SSQ+2*j,2)}, {v(T+2*j,2)}, {v(T+2*j,2)}, {v(SSQ+2*j,2)}" for j in P]
    o += [f"v_cvt_pk_bf16_f32 {v(HR+4*p+j)}, {v(T+2*j)}, {v(T+2*j+1)}" for j in P]
    return o
I("s_waitcnt lgkmcnt(3)")
for x in mfmas(0): I(x)
I("s_nop 7")
for p in range(13):
    g = gelu(p)
    if p < 12:
        m = mfmas(p+1)
        pos = MPOS
        for idx, x in enumerate(g):
            if idx == pos[0]: I("s_waitcnt lgkmcnt(0)")
            if idx in pos: I(m[pos.index(idx)])
            if idx == pos[-1] + 2 and p + 2 <= 12:
                for y in yread(p+2): I(y)
            I(x)
    else:
        for x in g: I(x)
    if p == 6:
        I("s_waitcnt vmcnt(0)")
        I("s_barrier")
stamp()
for sh in (8, 4, 2, 1):
    for j in range(8):
        I(f"v_add_f32_dpp {v(SSQ+j)}, {v(SSQ+j)}, {v(SSQ+j)} row_ror:{sh} row_mask:0xf bank_mask:0xf")
I("v_cmp_eq_u32 vcc, 1, v2")
I("v_lshlrev_b32 v5, 4, v3")
I("v_lshl_add_u32 v5, v2, 6, v5")
for j in range(4): I(f"v_cndmask_b32 {v(SSQ+j)}, {v(SSQ+j)}, {v(SSQ+4+j)}, vcc")
for j in range(4): I(f"v_or_b32 {v(SSQ+j)}, {s(S_OOB)}, {v(SSQ+j)}")
I(f"s_mul_i32 {s(S_T0)}, s2, 1536")
I(f"s_lshl_b32 {s(S_T1)}, {s(S_WAVE)}, 7")
I(f"s_add_u32 {s(S_T0)}, {s(S_T0)}, {s(S_T1)}")
I("s_mov_b32 exec_lo, 0x00030003"); I("s_mov_b32 exec_hi, 0x00030003")
I(f"buffer_store_dwordx4 {v(SSQ,4)}, v5, {s(SWS,4)}, {s(S_T0)} offen sc1")
I("s_mov_b64 exec, -1")
WP = 16
I("v_bfe_u32 v5, v1, 2, 2")
I("v_lshl_add_u32 v5, v3, 2, v5")
I("v_mul_u32_u24 v5, 192, v5")
I("v_and_b32 v6, 3, v1")
I("v_lshl_add_u32 v5, v6, 3, v5")
I(f"s_lshl_b32 {s(S_T0)}, {s(S_G6)}, 5")
I(f"v_add_u32 v5, {s(S_T0)}, v5")
I(f"v_add_u32 v6, {6*6144}, v5")
for ks in range(12):
    for t in range(2):
        I(f"ds_read_b64_tr_b16 {v(WP+4*ks+2*t,2)}, {'v5' if ks<6 else 'v6'} offset:{(ks%6)*6144+t*3072}")
I(f"s_lshl_b32 {s(S_T0)}, {s(S_WAVE)}, 10")
I(f"v_add_u32 v5, {s(S_T0)}, v4")
I(f"v_add_u32 v6, {5*12288}, v5")
I(f"v_add_u32 v7, {10*12288}, v5")
I("v_lshl_add_u32 v8, v3, 2, v2")
I("v_lshlrev_b32 v8, 4, v8")
I(f"s_lshl_b32 {s(S_T0)}, {s(S_WAVE)}, 8")
I(f"s_add_u32 {s(S_T0)}, {s(S_T0)}, {HLEFT}")
I(f"v_add_u32 v8, {s(S_T0)}, v8")
I("s_waitcnt lgkmcnt(0)")
I("s_barrier")
for p in range(12):
    I(f"ds_write_b128 {v(5+p//5)}, {v(HR+4*p,4)} offset:{(p%5)*12288}")
I("s_mov_b32 exec_lo, 0x000f000f"); I("s_mov_b32 exec_hi, 0x000f000f")
I(f"ds_write_b128 v8, {v(HR+48,4)}")
I("s_mov_b64 exec, -1")
def wavesum(regs, t):
    for sh in (8, 4, 2, 1):
        for r in regs: I(f"v_add_f32_dpp {v(r)}, {v(r)}, {v(r)} row_ror:{sh} row_mask:0xf bank_mask:0xf")
        if len(regs) < 3: I("s_nop 1")
    for op in ("v_permlane16_swap_b32", "v_permlane32_swap_b32"):
        for k, r in enumerate(regs): I(f"v_mov_b32 {v(t+k)}, {v(r)}")
        I("s_nop 1")
        for k, r in enumerate(regs): I(f"{op} {v(r)}, {v(t+k)}")
        I("s_nop 1")
        for k, r in enumerate(regs): I(f"v_add_f32 {v(r)}, {v(r)}, {v(t+k)}")
def red8(regs, t):
    for r in regs: I(f"v_add_f32_dpp {v(r)}, {v(r)}, {v(r)} row_ror:8 row_mask:0xf bank_mask:0xf")
    for op in ("v_permlane16_swap_b32", "v_permlane32_swap_b32"):
        for k, r in enumerate(regs): I(f"v_mov_b32 {v(t+k)}, {v(r)}")
        I("s_nop 1")
        for k, r in enumerate(regs): I(f"{op} {v(r)}, {v(t+k)}")
        I("s_nop 1")
        for k, r in enumerate(regs): I(f"v_add_f32 {v(r)}, {v(r)}, {v(t+k)}")
C("WG<12: reduce one 128-B column (32 channels) over all 256 rows; waves 2..9 take 32 rows each")
I("s_cmp_ge_u32 s2, 12")
I("s_cbranch_scc1 L_nored")
I(f"s_sub_u32 {s(S_T0)}, {s(S_WAVE)}, 2")
I(f"s_cmp_ge_u32 {s(S_T0)}, 8")
I("s_cbranch_scc1 L_rb")
I("v_lshrrev_b32 v9, 3, v1")
I("v_mul_u32_u24 v9, 1536, v9")
I("v_and_b32 v10, 7, v1")
I("v_lshlrev_b32 v10, 4, v10")
I("v_add_u32 v9, v9, v10")
I(f"s_mul_i32 {s(S_T1)}, {s(S_T0)}, {32*1536}")
I(f"s_lshl_b32 {s(S_T2)}, s2, 7")
I(f"s_add_u32 {s(S_T1)}, {s(S_T1)}, {s(S_T2)}")
I(f"v_add_u32 v9, {s(S_T1)}, v9")
I(f"s_lshl_b32 {s(S_T0)}, {s(S_T0)}, 7")
I(f"s_add_u32 {s(S_T0)}, {s(S_T0)}, {ROFF}")
I(f"v_add_u32 v10, {s(S_T0)}, v10")
I(f"s_mov_b32 {s(S_CNT)}, {SPIN}")
poll("L_p1", [f"buffer_load_dwordx4 {v(64+4*q,4)}, v9, {s(SWS,4)}, {s(S_K+q)} offen sc1" for q in range(4)], list(range(64, 80)), 80)
for j in range(4):
    I(f"v_add_f32 {v(64+j)}, abs({v(64+j)}), abs({v(68+j)})")
    I(f"v_add_f32 {v(72+j)}, abs({v(72+j)}), abs({v(76+j)})")
for j in range(4): I(f"v_add_f32 {v(64+j)}, {v(64+j)}, {v(72+j)}")
I("s_nop 1")
red8([64, 65, 66, 67], 68)
I("s_mov_b64 exec, 0xff")
I("ds_write_b128 v10, v[64:67]")
I("s_mov_b64 exec, -1")
I("s_waitcnt lgkmcnt(0)")
LBL("L_rb")
I("s_barrier")
I(f"s_cmp_eq_u32 {s(S_WAVE)}, 2")
I("s_cbranch_scc0 L_nored")
I(f"v_add_u32 v9, {ROFF}, v4")
I("ds_read_b128 v[64:67], v9")
I(f"s_lshl_b32 {s(S_T0)}, s2, 7")
I(f"s_add_u32 {s(S_T0)}, {s(S_T0)}, {PART_BYTES}")
I("s_waitcnt lgkmcnt(0)")
red8([64, 65, 66, 67], 68)
for j in range(4): I(f"v_or_b32 {v(64+j)}, {s(S_OOB)}, {v(64+j)}")
I("s_mov_b64 exec, 0xff")
I(f"buffer_store_dwordx4 v[64:67], v4, {s(SWS,4)}, {s(S_T0)} offen sc1")
I("s_mov_b64 exec, -1")
LBL("L_nored")
stamp()
C("bias = beta @ W2 (MFMA, beta broadcast over columns)")
I(f"v_lshlrev_b32 v5, 3, v3")
I(f"v_add_u32 v5, {BOFF}, v5")
for ks in range(12):
    I(f"ds_read2_b64 {v(64+4*ks,4)}, v5 offset0:{8*ks} offset1:{8*ks+4}")
BIAS = 164
VO = 2
I(f"s_mul_i32 {s(S_T0)}, {s(S_HH)}, {7*12288}")
I(f"v_add_u32 v9, {s(S_T0)}, v4")
I(f"v_add_u32 v10, {4*12288}, v9")
I("v_min_u32 v11, 3, v2")
I("v_lshl_add_u32 v11, v3, 2, v11")
I("v_lshlrev_b32 v11, 4, v11")
I(f"v_add_u32 v11, {HLEFT}, v11")
I("v_min_u32 v12, 11, v2")
I("v_lshlrev_b32 v12, 7, v12")
I("v_lshl_add_u32 v12, v3, 4, v12")
I(f"v_add_u32 v12, {SOFF}, v12")
for q in range(7): I(f"v_mov_b32 {v(VO+q)}, {v(VO0+q)}")
I("s_waitcnt lgkmcnt(0)")
for ks in range(12):
    I(f"v_mfma_f32_16x16x32_bf16 {v(BIAS,4)}, {v(WP+4*ks,4)}, {v(64+4*ks,4)}, {v(BIAS,4) if ks else '0'}")
F = 64
I(f"s_mov_b32 {s(S_T3)}, 0xffff0000")
I(f"v_mov_b32 v15, {s(S_T3)}")
I("s_nop 7")
for ks in range(12):
    for j in range(4):
        I(f"v_lshlrev_b32 {v(F+8*ks+2*j)}, 16, {v(WP+4*ks+j)}")
        I(f"v_and_b32 {v(F+8*ks+2*j+1)}, v15, {v(WP+4*ks+j)}")
ACC, RING = 16, 44
for q in range(7):
    I(f"buffer_load_dwordx2 {v(RING+2*q,2)}, {v(VO+q)}, {s(SX,4)}, 0 offen")
I(f"s_cmp_eq_u32 {s(S_WAVE)}, 1")
I("s_cbranch_scc0 L_ng")
I("v_lshlrev_b32 v13, 3, v1")
I("v_lshlrev_b32 v14, 2, v1")
I(f"buffer_load_dwordx2 v[58:59], v13, {s(SG,4)}, 0 offen")
I(f"buffer_load_dword v60, v14, {s(SG,4)}, 0 offen offset:512")
LBL("L_ng")
I("s_waitcnt vmcnt(0)")
for q in range(7):
    for j in range(2):
        I(f"v_lshlrev_b32 {v(ACC+4*q+2*j)}, 16, {v(RING+2*q+j)}")
        I(f"v_and_b32 {v(ACC+4*q+2*j+1)}, {s(S_T3)}, {v(RING+2*q+j)}")
    for j in range(2):
        I(f"v_pk_add_f32 {v(ACC+4*q+2*j,2)}, {v(ACC+4*q+2*j,2)}, {v(BIAS+2*j,2)}")
stamp()
C("wave 1: wait for the 384 totals, compute the GRN scale")
I(f"s_cmp_eq_u32 {s(S_WAVE)}, 1")
I("s_cbranch_scc0 L_nos")
I("v_lshlrev_b32 v14, 4, v1")
I(f"s_mov_b32 {s(S_T0)}, {PART_BYTES}")
I(f"s_mov_b32 {s(S_CNT)}, {SPIN}")
poll("L_p2", [f"buffer_load_dwordx4 v[44:47], v14, {s(SWS,4)}, {s(S_T0)} offen sc1", f"buffer_load_dwordx2 v[48:49], v13, {s(SWS,4)}, {s(S_T0)} offen offset:1024 sc1"], list(range(44, 50)), 50)
I(f"v_mov_b32 v50, {hex(f2u(1e-6))}")
I(f"v_mov_b32 v51, {hex(f2u(1.0/AS**2))}")
for j in range(6): I(f"v_fma_f32 {v(44+j)}, abs({v(44+j)}), v51, v50")
for j in range(6): I(f"v_sqrt_f32 {v(44+j)}, {v(44+j)}")
I("s_nop 0")
I("v_add_f32 v51, v44, v45"); I("v_add_f32 v52, v46, v47"); I("v_add_f32 v53, v48, v49")
I("v_add_f32 v51, v51, v52"); I("v_add_f32 v51, v51, v53")
I("s_nop 1")
wavesum([51], 52)
I(f"v_mov_b32 v52, {hex(f2u(1.0/384))}")
I("v_fma_f32 v51, v51, v52, v50")
I("v_rcp_f32 v51, v51")
for j in range(3):
    I(f"v_lshlrev_b32 {v(52+2*j)}, 16, {v(58+j)}")
    I(f"v_and_b32 {v(53+2*j)}, {s(S_T3)}, {v(58+j)}")
I(f"v_mov_b32 v50, {hex(f2u(1.0/AS))}")
I("v_mul_f32 v51, v51, v50")
for j in range(6): I(f"v_mul_f32 {v(44+j)}, {v(44+j)}, v51")
for j in range(6): I(f"v_fma_f32 {v(44+j)}, {v(44+j)}, {v(52+j)}, v50")
I(f"v_add_u32 v14, {SOFF}, v14")
I(f"v_add_u32 v13, {SOFF+1024}, v13")
I("ds_write_b128 v14, v[44:47]")
I("ds_write_b64 v13, v[48:49]")
LBL("L_nos")
I("s_waitcnt lgkmcnt(0)")
I("s_barrier")
stamp()
SR = 160
NR = 5
def gemm2(half):
    nt = 7 if half == 0 else 6
    def rd(idx):
        ks, q = divmod(idx, nt)
        dst = v(RING + 4*(idx % NR), 4)
        if half == 1 and q == 5: return f"ds_read_b128 {dst}, v11 offset:{ks*256}"
        return f"ds_read_b128 {dst}, {'v9' if q < 4 else 'v10'} offset:{(q%4)*12288+ks*1024}"
    def scale(ks):
        o = [f"v_mul_f32_dpp {v(F+8*ks+j)}, {v(SR+j)}, {v(F+8*ks+j)} row_newbcast:{ks} row_mask:0xf bank_mask:0xf" for j in range(8)]
        o += [f"v_cvt_pk_bf16_f32 {v(F+8*ks+j)}, {v(F+8*ks+2*j)}, {v(F+8*ks+2*j+1)}" for j in range(4)]
        return o
    I(f"ds_read_b128 {v(SR,4)}, v12")
    I(f"ds_read_b128 {v(SR+4,4)}, v12 offset:64")
    for idx in range(NR): I(rd(idx))
    I(f"s_waitcnt lgkmcnt({NR})")
    for x in scale(0): I(x)
    I("s_nop 1")
    tot = 12 * nt
    for ks in range(12):
        sc = scale(ks+1) if ks < 11 else []
        for q in range(nt):
            idx = ks*nt + q
            I(f"s_waitcnt lgkmcnt({min(NR-1, tot-1-idx)})")
            I(f"v_mfma_f32_16x16x32_bf16 {v(ACC+4*q,4)}, {v(F+8*ks,4)}, {v(RING+4*(idx%NR),4)}, {v(ACC+4*q,4)}")
            if idx + NR < tot: I(rd(idx+NR))
            if q < 5:
                n = [3, 3, 2, 2, 2][q]
                for x in sc[:n]: I(x)
                sc = sc[n:]
    I("s_nop 7")
    for q in range(nt):
        I(f"v_cvt_pk_bf16_f32 {v(RING+2*q)}, {v(ACC+4*q)}, {v(ACC+4*q+1)}")
        I(f"v_cvt_pk_bf16_f32 {v(RING+2*q+1)}, {v(ACC+4*q+2)}, {v(ACC+4*q+3)}")
        I(f"buffer_store_dwordx2 {v(RING+2*q,2)}, {v(VO+q)}, {s(SO,4)}, 0 offen")
I(f"s_cmp_eq_u32 {s(S_HH)}, 0")
I("s_cbranch_scc0 L_g2b")
gemm2(0)
I("s_branch L_fin")
LBL("L_g2b")
gemm2(1)
LBL("L_fin")
if STAMP:
    I("s_waitcnt vmcnt(0)")
    stamp()
    C("diagnostic build only: wave STAMP-1 of each WG writes its stamps to ws + 1 MiB")
    I(f"s_cmp_eq_u32 {s(S_WAVE)}, {STAMP-1}")
    I("s_cbranch_scc0 L_end")
    I("s_memrealtime s[48:49]")
    I("s_waitcnt lgkmcnt(0)")
    I(f"s_mov_b32 {s(SWS+2)}, 0x200000")
    I(f"s_lshl_b32 {s(S_T0)}, s2, 6")
    I(f"s_add_u32 {s(S_T0)}, {s(S_T0)}, 0x100000")
    I("v_mov_b32 v1, 0")
    for k in range(nstamp[0]):
        I(f"v_mov_b32 v2, {s(S_ST+2*k)}")
        I(f"buffer_store_dword v2, v1, {s(SWS,4)}, {s(S_T0)} offen offset:{4*k}")
if STAMP:
    I("v_mov_b32 v2, s100")
    I(f"buffer_store_dword v2, v1, {s(SWS,4)}, {s(S_T0)} offen offset:56")
    I("v_mov_b32 v2, s48")
    I(f"buffer_store_dword v2, v1, {s(SWS,4)}, {s(S_T0)} offen offset:60")
LBL("L_end")
I("s_endpgm")
L += ['.section .rodata,"a"', ".p2align 6", f".amdhsa_kernel {NAME}_kernel",
      "  .amdhsa_next_free_vgpr 168", "  .amdhsa_next_free_sgpr 102", "  .amdhsa_accum_offset 168",
      "  .amdhsa_group_segment_fixed_size 0", "  .amdhsa_kernarg_size 72", "  .amdhsa_user_sgpr_count 2",
      "  .amdhsa_user_sgpr_kernarg_segment_ptr 1", "  .amdhsa_system_sgpr_workgroup_id_x 1", ".end_amdhsa_kernel"]
open(sys.argv[1], "w").write("\n".join(L) + "\n")
```

```python
import sys, struct
NAME = "standalone__modern_conv_block_convnext_v2__vision"
OPT = dict(a.split("=") for a in sys.argv[2:]) if len(sys.argv) > 2 else {}
STAMP = int(OPT.get("stamp", 0))
L = []
def I(s): L.append("    " + s)
def LBL(s): L.append(s + ":")
def C(s): L.append("    ; " + s)
def f2u(f): return struct.unpack("<I", struct.pack("<f", f))[0]
def v(a, n=1): return f"v{a}" if n == 1 else f"v[{a}:{a+n-1}]"
def s(a, n=1): return f"s{a}" if n == 1 else f"s[{a}:{a+n-1}]"

CS, OS = 808, 6480
R2 = 77888
RS, PS = 5616, 400
MISC = 158208
SOFF, BOFF = MISC, MISC + 1536
ROFF = BOFF + 768
LDS = ROFF + 1024
HLEFT = 147456
PART_BYTES = 256 * 1536
WS_BYTES = PART_BYTES + 1536
XB = 224 * 224 * 96 * 2
SX, SDW, SW1, SW2, SG, SB, SO, SD, SWS = 4, 8, 12, 16, 20, 24, 28, 32, 36
S_WAVE, S_Y0, S_X0, S_T0, S_T1, S_T2, S_T3 = 40, 41, 42, 43, 44, 45, 46
S_OOB, S_SELLO, S_SELHI = 47, 66, 67
S_K = 68
S_EX = 74
S_CNT = 76
S_G6, S_HH = 77, 78
S_WV10 = 79
S_ST = 80
C0 = 2.0 * (2.0/3.141592653589793)**0.5 * 1.4426950408889634
AS = (C0*0.044715)**(1.0/3)
MPOS = [int(x) for x in OPT.get("mpos", "8,9,10,20,21,22").split(",")]
nstamp = [0]
PRO = int(OPT.get("pro", 0))
def pstamp():
    if PRO: stamp(True)
def stamp(force=False):
    if STAMP and nstamp[0] < 10 and (not PRO or force or nstamp[0] == 0 or nstamp[0] >= 7):
        I(f"s_memtime {s(S_ST + 2*nstamp[0], 2)}")
        nstamp[0] += 1
SK = int(OPT.get('sk', 32))
def yoff(p): return (16*p // 14) * RS + (16*p // 56) * SK + (16*p % 14) * PS

hdr = open("cdna_kernels/" + NAME + ".s.ref").read().split("\n")
for ln in hdr:
    if ln.startswith("; @launch"):
        L.append(f"; @launch grid=(256,1,1) block=(768,1,1) lds={LDS}")
    elif ln.startswith(";"):
        L.append(ln)
    else:
        break
L += ['.amdgcn_target "amdgcn-amd-amdhsa--gfx950"', ".text", f".globl {NAME}_kernel", ".p2align 8",
      f".type {NAME}_kernel,@function", f"{NAME}_kernel:"]

I("s_cmp_ge_u32 s2, 256")
I("s_cbranch_scc1 L_end")
I("s_load_dwordx16 s[48:63], s[0:1], 0")
I("s_load_dwordx2 s[64:65], s[0:1], 64")
if STAMP: I("s_memrealtime s[100:101]")
stamp()
I("v_lshrrev_b32 v2, 6, v0")
I("v_and_b32 v1, 63, v0")
I(f"v_readfirstlane_b32 {s(S_WAVE)}, v2")
C("tile coords: xcd-local 4x8 blocks of tiles (speed only)")
I(f"s_and_b32 {s(S_T0)}, s2, 7")
I(f"s_lshr_b32 {s(S_T1)}, s2, 3")
I(f"s_lshr_b32 {s(S_T2)}, {s(S_T0)}, 1")
I(f"s_lshl_b32 {s(S_T2)}, {s(S_T2)}, 2")
I(f"s_lshr_b32 {s(S_T3)}, {s(S_T1)}, 3")
I(f"s_add_u32 {s(S_T2)}, {s(S_T2)}, {s(S_T3)}")
I(f"s_mul_i32 {s(S_Y0)}, {s(S_T2)}, 14")
I(f"s_and_b32 {s(S_T2)}, {s(S_T0)}, 1")
I(f"s_lshl_b32 {s(S_T2)}, {s(S_T2)}, 3")
I(f"s_and_b32 {s(S_T3)}, {s(S_T1)}, 7")
I(f"s_add_u32 {s(S_T2)}, {s(S_T2)}, {s(S_T3)}")
I(f"s_mul_i32 {s(S_X0)}, {s(S_T2)}, 14")
I(f"s_mov_b32 {s(S_OOB)}, 0x80000000")
I(f"s_mov_b32 {s(S_SELLO)}, 0x05040100")
I(f"s_mov_b32 {s(S_SELHI)}, 0x07060302")
for k in range(6): I(f"s_mov_b32 {s(S_K+k)}, {12288*k}")
I(f"s_cmp_ge_u32 {s(S_WAVE)}, 6")
I(f"s_cselect_b32 {s(S_HH)}, 1, 0")
I(f"s_mul_i32 {s(S_T0)}, {s(S_HH)}, 6")
I(f"s_sub_u32 {s(S_G6)}, {s(S_WAVE)}, {s(S_T0)}")
I(f"s_lshl_b32 {s(S_WV10)}, {s(S_WAVE)}, 10")
I(f"s_sub_u32 {s(S_T0)}, {s(S_Y0)}, 3")
I(f"s_sub_u32 {s(S_T1)}, {s(S_X0)}, 3")
I(f"s_movk_i32 {s(S_T2)}, 224")
I(f"s_movk_i32 {s(S_T3)}, 192")
def srd(d, b, n):
    I(f"s_mov_b32 {s(d)}, {s(b)}"); I(f"s_and_b32 {s(d+1)}, {s(b+1)}, 0xffff")
    I(f"s_mov_b32 {s(d+2)}, {n}"); I(f"s_mov_b32 {s(d+3)}, 0x00020000")
I(f"v_mov_b32 v10, {s(S_OOB)}")
def xaddr(k):
    I(f"v_add_u32 v3, {768*k}, v0")
    I("v_mul_u32_u24 v4, 43691, v3")
    I("v_lshrrev_b32 v4, 19, v4")
    I("v_mul_u32_u24 v6, 205, v4")
    I("v_mul_u32_u24 v5, 12, v4")
    I("v_lshrrev_b32 v6, 10, v6")
    I("v_sub_u32 v5, v3, v5")
    I("v_mul_u32_u24 v7, 5, v6")
    I("v_sub_u32 v7, v4, v7")
    I(f"v_add_u32 v9, {s(S_T0)}, v6")
    I(f"v_lshl_add_u32 v11, v7, 2, {s(S_T1)}")
    I(f"v_mad_i32_i24 v8, v9, {s(S_T2)}, v11")
    I(f"v_mul_i32_i24 v8, v8, {s(S_T3)}")
    I("v_lshl_add_u32 v8, v5, 4, v8")
    if k == 1:
        I("v_cmp_gt_u32 vcc, 1200, v3")
        I("s_nop 1")
        I("v_cndmask_b32 v11, v12, v11, vcc")
    I(f"v_cmp_gt_u32 vcc, {s(S_T2)}, v9")
    I("s_nop 1")
    I(f"v_cndmask_b32 v11, v12, v11, vcc")
    for i in range(4):
        I(f"v_add_u32 v9, {i}, v11")
        I(f"v_cmp_gt_u32 vcc, {s(S_T2)}, v9")
        I(f"v_add_u32 v13, {192*i}, v8")
        I("s_nop 0")
        I(f"v_cndmask_b32 {v(56+4*k+i)}, v10, v13, vcc")
    if k == 0:
        pstamp()
        I("s_waitcnt lgkmcnt(0)")
        pstamp()
        srd(SX, 48, XB)
        I(f"s_cmp_eq_u32 {s(S_WAVE)}, 11")
        I("s_cbranch_scc0 L_nz")
        srd(SWS, 64, WS_BYTES)
        C("wave 11: zero this WG's hand-off slots first")
        I("v_mov_b32 v68, 0"); I("v_mov_b32 v69, 0"); I("v_mov_b32 v70, 0"); I("v_mov_b32 v71, 0")
        I(f"s_mul_i32 {s(S_CNT)}, s2, 1536")
        I("v_lshlrev_b32 v72, 4, v1")
        I(f"buffer_store_dwordx4 v[68:71], v72, {s(SWS,4)}, {s(S_CNT)} offen sc1")
        I(f"s_lshl_b32 {s(S_EX)}, s2, 4")
        I(f"s_add_u32 {s(S_EX)}, {s(S_EX)}, {PART_BYTES}")
        I(f"s_add_u32 {s(S_CNT)}, {s(S_CNT)}, 1024")
        I(f"v_add_u32 v73, {s(S_CNT)}, v72")
        I(f"v_mov_b32 v74, {s(S_EX)}")
        I("v_cmp_eq_u32 vcc, 32, v1")
        I("s_nop 1")
        I("v_cndmask_b32 v74, v10, v74, vcc")
        I("v_cmp_gt_u32 vcc, 32, v1")
        I("s_nop 1")
        I("v_cndmask_b32 v73, v74, v73, vcc")
        I(f"buffer_store_dwordx4 v[68:71], v73, {s(SWS,4)}, 0 offen sc1")
        LBL("L_nz")
    for i in range(4):
        I(f"buffer_load_dwordx4 {v(16+16*k+4*i,4)}, {v(56+4*k+i)}, {s(SX,4)}, 0 offen")
    I(f"v_mul_u32_u24 v8, {OS}, v5")
    I("v_mul_u32_u24 v9, 40, v6")
    I("v_lshl_add_u32 v9, v7, 3, v9")
    I(f"v_add_u32 {v(64+k)}, v8, v9")
I("v_mov_b32 v12, 1000")
xaddr(0)
I(f"s_cmp_ge_u32 {s(S_WAVE)}, 7")
I("s_cbranch_scc1 L_x1a")
xaddr(1)
LBL("L_x1a")
srd(SDW, 50, 7*7*96*2); srd(SB, 58, 768)
I(f"s_cmp_eq_u32 {s(S_WAVE)}, 11")
I("s_cbranch_scc0 L_nb")
I("v_lshlrev_b32 v7, 4, v1")
I(f"buffer_load_dwordx4 v[12:15], v7, {s(SB,4)}, 0 offen")
I("s_branch L_nb2")
LBL("L_nb")
I("v_mul_u32_u24 v3, 683, v0")
I("v_lshrrev_b32 v3, 16, v3")
I("v_mul_u32_u24 v4, 96, v3")
I("v_sub_u32 v4, v0, v4")
I("v_mul_u32_u24 v5, 1344, v3")
I("v_lshl_add_u32 v5, v4, 1, v5")
for j in range(7):
    I(f"buffer_load_ushort {v(48+j)}, v5, {s(SDW,4)}, 0 offen offset:{192*j}")
I("v_mul_u32_u24 v6, 7, v4")
I("v_add_u32 v6, v6, v3")
I("v_mul_u32_u24 v6, 48, v6")
I(f"v_add_u32 v66, {R2}, v6")
LBL("L_nb2")
srd(SWS, 64, WS_BYTES); srd(SW1, 52, 96*384*2); srd(SW2, 54, 96*384*2); srd(SG, 56, 768); srd(SO, 60, XB); srd(SD, 62, 256)
pstamp()
def xpose(k):
    b = 16 + 16*k
    for d in range(4):
        for hf, sel in ((0, S_SELLO), (1, S_SELHI)):
            t = 80 + 2*(2*d+hf) + 16*k
            I(f"v_perm_b32 {v(t)}, {v(b+4+d)}, {v(b+d)}, {s(sel)}")
            I(f"v_perm_b32 {v(t+1)}, {v(b+12+d)}, {v(b+8+d)}, {s(sel)}")
    for c in range(8):
        I(f"ds_write_b64 {v(64+k)}, {v(80+16*k+2*c,2)} offset:{c*CS}")
I(f"s_cmp_ge_u32 {s(S_WAVE)}, 7")
I("s_cbranch_scc1 L_w7")
I("s_waitcnt vmcnt(11)")
I("s_branch L_w0")
LBL("L_w7")
I(f"s_cmp_eq_u32 {s(S_WAVE)}, 11")
I("s_cbranch_scc1 L_w11")
I("s_waitcnt vmcnt(7)")
I("s_branch L_w0")
LBL("L_w11")
I("s_waitcnt vmcnt(0)")
LBL("L_w0")
pstamp()
xpose(0)
I(f"s_cmp_ge_u32 {s(S_WAVE)}, 7")
I("s_cbranch_scc1 L_x1skip")
I("v_cmp_gt_u32 vcc, 432, v0")
I(f"s_and_saveexec_b64 {s(S_EX,2)}, vcc")
I("s_waitcnt vmcnt(7)")
xpose(1)
I(f"s_mov_b64 exec, {s(S_EX,2)}")
LBL("L_x1skip")
pstamp()
I("s_waitcnt vmcnt(0)")
pstamp()
I(f"s_cmp_eq_u32 {s(S_WAVE)}, 11")
I("s_cbranch_scc1 L_beta")
C("build Toeplitz source table [0,R0,R1,R2][R3,0,0,O0][O1,O2,O3,0]")
I("v_mov_b32 v68, 0")
I("v_lshl_or_b32 v69, v49, 16, v48")
I("v_lshl_or_b32 v70, v51, 16, v50")
I("v_lshl_or_b32 v71, v53, 16, v52")
I("v_mov_b32 v72, v54"); I("v_mov_b32 v73, 0"); I("v_mov_b32 v74, 0")
I("v_lshlrev_b32 v75, 16, v48")
I("v_lshl_or_b32 v76, v50, 16, v49")
I("v_lshl_or_b32 v77, v52, 16, v51")
I("v_lshl_or_b32 v78, v54, 16, v53")
I("v_mov_b32 v79, 0")
I("v_cmp_gt_u32 vcc, 673, v0")
I(f"s_and_saveexec_b64 {s(S_EX,2)}, vcc")
I(f"v_mov_b32 v7, {R2 + 672*48}")
I("v_cmp_eq_u32 vcc, 672, v0")
I("s_nop 1")
I("v_cndmask_b32 v66, v66, v7, vcc")
I("ds_write_b128 v66, v[68:71]")
I("ds_write_b128 v66, v[72:75] offset:16")
I("ds_write_b128 v66, v[76:79] offset:32")
I(f"s_mov_b64 exec, {s(S_EX,2)}")
I("s_branch L_xw")
LBL("L_beta")
I("v_cmp_gt_u32 vcc, 48, v1")
I(f"s_and_saveexec_b64 {s(S_EX,2)}, vcc")
I(f"v_add_u32 v7, {BOFF}, v7")
I("ds_write_b128 v7, v[12:15]")
I(f"s_mov_b64 exec, {s(S_EX,2)}")
I("v_mov_b32 v9, 0"); I("v_mov_b32 v8, 1")
I("s_mov_b64 exec, 1")
I(f"buffer_atomic_add v8, v9, {s(SD,4)}, 0 offen")
I("s_mov_b64 exec, -1")
LBL("L_xw")
I("v_lshrrev_b32 v2, 2, v1")
I("v_and_b32 v3, 3, v1")
I(f"s_lshl_b32 {s(S_T0)}, {s(S_G6)}, 4")
I(f"v_add_u32 v4, {s(S_T0)}, v2")
I("v_mul_u32_u24 v5, 336, v4")
I("v_and_b32 v6, 1, v3")
I("v_mul_u32_u24 v6, 24, v6")
I("v_lshrrev_b32 v7, 1, v3")
I("v_xor_b32 v7, 1, v7")
I("v_lshl_add_u32 v6, v7, 2, v6")
I(f"v_add_u32 v6, {R2}, v6")
I("v_add_u32 v5, v5, v6")
I("v_lshrrev_b32 v6, 3, v4")
I(f"v_mul_u32_u24 v6, {OS}, v6")
I("v_and_b32 v7, 7, v4")
I(f"v_mul_u32_u24 v7, {CS}, v7")
I("v_add_u32 v6, v6, v7")
I("v_mul_u32_u24 v7, 160, v3")
I(f"s_mul_i32 {s(S_T1)}, {s(S_HH)}, 80")
I(f"v_add3_u32 v6, v6, v7, {s(S_T1)}")
I(f"v_mul_u32_u24 v7, {4*RS+SK}, v3")
I("v_lshl_add_u32 v7, v4, 2, v7")
I(f"s_mul_i32 {s(S_T1)}, {s(S_HH)}, {2*RS}")
I(f"s_add_u32 {s(S_T1)}, {s(S_T1)}, {R2}")
I(f"v_add_u32 v7, {s(S_T1)}, v7")
I(f"s_lshl_b32 {s(S_T1)}, {s(S_HH)}, 2")
I(f"v_add_u32 v9, {s(S_T1)}, v3")
I(f"v_mov_b32 v10, {R2 + 384}")
I("v_cmp_eq_u32 vcc, 7, v9")
I("s_nop 1")
I("v_cndmask_b32 v7, v7, v10, vcc")
I("v_mul_u32_u24 v8, 1366, v0")
I("v_lshrrev_b32 v8, 16, v8")
I("v_mul_u32_u24 v9, 48, v8")
I("v_sub_u32 v9, v0, v9")
I("v_and_b32 v10, 3, v8")
I("v_bfe_u32 v11, v8, 3, 1")
I("v_lshl_or_b32 v10, v11, 2, v10")
I("v_lshlrev_b32 v10, 1, v10")
I("v_xor_b32 v9, v9, v10")
I("v_mul_u32_u24 v8, 768, v8")
I("v_lshl_add_u32 v8, v9, 4, v8")
I("s_waitcnt lgkmcnt(0)")
I("s_barrier")
stamp()
A0, B0, AC = 16, 58, 80
for kb in range(5):
    I(f"ds_read_b64 {v(B0+2*kb,2)}, v6 offset:{kb*8}")
for i in range(7):
    for q in range(3):
        I(f"ds_read2_b32 {v(A0+6*i+2*q,2)}, v5 offset0:{12*i+2*q} offset1:{12*i+2*q+1}")
C("warm L2 with a slice of W1 / W2 (speed only; the values are never used)")
I(f"s_cmp_ge_u32 {s(S_WAVE)}, 6")
I("s_cbranch_scc1 L_npf")
I(f"s_lshr_b32 {s(S_T0)}, s2, 3")
I(f"s_mul_i32 {s(S_T0)}, {s(S_T0)}, 2304")
I("v_lshlrev_b32 v9, 4, v0")
I(f"s_cmp_ge_u32 {s(S_WAVE)}, 3")
I("s_cbranch_scc1 L_pf2")
I(f"buffer_load_dwordx4 v[112:115], v9, {s(SW1,4)}, {s(S_T0)} offen")
I("s_branch L_npf")
LBL("L_pf2")
I("v_subrev_u32 v9, 3072, v9")
I(f"buffer_load_dwordx4 v[112:115], v9, {s(SW2,4)}, {s(S_T0)} offen")
LBL("L_npf")
first = set()
for rr in range(8):
    bb = B0 + 10*(rr % 2)
    if rr < 7:
        nb = B0 + 10*((rr+1) % 2)
        for kb in range(5):
            I(f"ds_read_b64 {v(nb+2*kb,2)}, v6 offset:{(rr+1)*40+kb*8}")
        I("s_waitcnt lgkmcnt(5)")
    else:
        I("s_waitcnt lgkmcnt(0)")
    for kq in range(3):
        for hl in range(2):
            i = rr - hl
            if not (0 <= i <= 6): continue
            for a in range(4):
                kb = a + kq
                if kb > 4: continue
                acc = AC + 16*hl + 4*a
                cin = v(acc, 4) if (hl, a) in first else "0"
                first.add((hl, a))
                I(f"v_mfma_f32_4x4x4_16b_bf16 {v(acc,4)}, {v(A0+6*i+2*kq,2)}, {v(bb+2*kb,2)}, {cin}")
I("s_barrier")
stamp()
def dma(srdreg, voff):
    I(f"s_lshl_b32 {s(S_T0)}, {s(S_WAVE)}, 10")
    for k in range(6):
        I(f"s_add_u32 m0, {s(S_T0)}, {s(S_K+k)}")
        I("s_nop 0")
        I(f"buffer_load_dwordx4 {voff}, {s(srdreg,4)}, {s(S_K+k)} offen lds")
mark0 = len(L)
I("v_and_b32 v2, 15, v1")
I("v_lshrrev_b32 v3, 4, v1")
I("v_lshlrev_b32 v4, 4, v1")
def pixaddr(dst, nreg):
    I(f"v_mul_u32_u24 v10, 4682, {nreg}")
    I("v_lshrrev_b32 v10, 16, v10")
    I("v_mul_u32_u24 v11, 14, v10")
    I(f"v_sub_u32 v11, {nreg}, v11")
    I(f"v_lshrrev_b32 {dst}, 2, v10")
    I(f"v_mul_u32_u24 {dst}, {SK}, {dst}")
    I(f"v_mul_u32_u24 v10, {RS}, v10")
    I(f"v_add_u32 v10, v10, {dst}")
    I(f"v_mul_u32_u24 v11, {PS}, v11")
    I(f"v_add_u32 v10, {R2}, v10")
    I("v_lshl_add_u32 v11, v3, 5, v11")
    I(f"v_add_u32 {dst}, v10, v11")
I(f"s_lshl_b32 {s(S_T0)}, {s(S_WAVE)}, 4")
I(f"v_add_u32 v5, {s(S_T0)}, v2")
pixaddr("v5", "v5")
I(f"v_mov_b32 v12, {hex(f2u(-1.0/96))}")
I(f"v_mov_b32 v13, {hex(f2u(1.0/AS**2))}")
I(f"v_mov_b32 v14, {hex(f2u(1e-5/AS**2))}")
VO0 = 156
C("residual/out offsets")
I(f"s_mul_i32 {s(S_T1)}, {s(S_Y0)}, 224")
I(f"s_add_u32 {s(S_T1)}, {s(S_T1)}, {s(S_X0)}")
I(f"s_mul_i32 {s(S_T1)}, {s(S_T1)}, 192")
I(f"s_lshl_b32 {s(S_T2)}, {s(S_G6)}, 5")
I(f"s_add_u32 {s(S_T1)}, {s(S_T1)}, {s(S_T2)}")
I(f"v_lshl_add_u32 v15, v3, 3, {s(S_T1)}")
I(f"s_mul_i32 {s(S_T2)}, {s(S_HH)}, 112")
I(f"s_movk_i32 {s(S_T1)}, 210")
I(f"s_movk_i32 {s(S_T3)}, 192")
I(f"v_add_u32 v6, {s(S_T2)}, v2")
for q in range(7):
    if q: I("v_add_u32 v6, 16, v6")
    I("v_mul_u32_u24 v9, 4682, v6")
    I("v_lshrrev_b32 v9, 16, v9")
    I(f"v_mad_u32_u24 v9, v9, {s(S_T1)}, v6")
    I(f"v_mad_u32_u24 {v(VO0+q)}, v9, {s(S_T3)}, v15")
    if q >= 5:
        I(f"v_mov_b32 v9, {s(S_OOB)}")
        I("v_cmp_gt_u32 vcc, 196, v6")
        I("s_nop 1")
        I(f"v_cndmask_b32 {v(VO0+q)}, v9, {v(VO0+q)}, vcc")
valu = L[mark0:]; del L[mark0:]
wr = [f"    ds_write_b32 v7, {v(AC+16*hl+col)} offset:{hl*RS+col*PS}" for hl in range(2) for col in range(14)]
dm = [[f"    s_add_u32 m0, {s(S_WV10)}, {s(S_K+k)}", "    s_nop 0", f"    buffer_load_dwordx4 v8, {s(SW1,4)}, {s(S_K+k)} offen lds"] for k in range(6)]
per = (len(valu) + 27) // 28
for i in range(28):
    L.append(wr[i])
    if i % 4 == 3 and dm and OPT.get("dl") != "1": L += dm.pop(0)
    L += valu[per*i:per*(i+1)]
dmlate = dm
I(f"v_readfirstlane_b32 {s(S_T1)}, v5")
I("s_waitcnt lgkmcnt(0)")
I("s_barrier")
stamp()
for x in dmlate: L += x
I(f"s_cmp_eq_u32 {s(S_WAVE)}, 1")
I("s_cbranch_scc0 L_nq")
I("v_mov_b32 v9, 0")
I(f"buffer_load_dword v15, v9, {s(SD,4)}, 0 offen sc1")
LBL("L_nq")
SPIN = 1 << 17
def spin_tail(lbl):
    I(f"s_sub_u32 {s(S_CNT)}, {s(S_CNT)}, 1")
    I(f"s_cmp_eq_u32 {s(S_CNT)}, 0")
    I(f"s_cbranch_scc0 {lbl}")
def poll(lbl, loads, regs, t):
    LBL(lbl)
    for x in loads: I(x)
    I("s_waitcnt vmcnt(0)")
    I(f"v_and_b32 {v(t)}, {v(regs[0])}, {v(regs[1])}")
    for j in regs[2:]: I(f"v_and_b32 {v(t)}, {v(t)}, {v(j)}")
    I(f"v_cmp_le_i32 vcc, 0, {v(t)}")
    I("s_nop 1")
    I("s_mov_b64 exec, vcc")
    I(f"s_cbranch_execz {lbl}d")
    spin_tail(lbl)
    LBL(lbl + "d")
    I("s_mov_b64 exec, -1")
def xgroup(r, t):
    I(f"v_mov_b32 {v(t)}, {v(r)}"); I("s_nop 1")
    I(f"v_permlane16_swap_b32 {v(r)}, {v(t)}"); I("s_nop 1")
    I(f"v_add_f32 {v(r)}, {v(r)}, {v(t)}")
    I(f"v_mov_b32 {v(t)}, {v(r)}"); I("s_nop 1")
    I(f"v_permlane32_swap_b32 {v(r)}, {v(t)}"); I("s_nop 1")
    I(f"v_add_f32 {v(r)}, {v(r)}, {v(t)}")
def LN(left):
    X, T = 16, 40
    for sI in range(3):
        for t in range(2):
            I(f"ds_read_b128 {v(X+8*sI+4*t,4)}, v5 offset:{sI*128+t*16}")
    I(f"v_add_u32 v6, {s(S_T1)}, v4")
    I("s_waitcnt lgkmcnt(0)")
    Q = T + 8
    for j in range(3): I(f"v_pk_add_f32 {v(T+2*j,2)}, {v(X+2*j,2)}, {v(X+6+2*j,2)}"); I(f"v_pk_mul_f32 {v(Q+2*j,2)}, {v(X+2*j,2)}, {v(X+2*j,2)}")
    for j in range(3, 12):
        if j >= 6: I(f"v_pk_add_f32 {v(T+2*(j%3),2)}, {v(T+2*(j%3),2)}, {v(X+2*j,2)}")
        I(f"v_pk_fma_f32 {v(Q+2*(j%3),2)}, {v(X+2*j,2)}, {v(X+2*j,2)}, {v(Q+2*(j%3),2)}")
    for R_ in (T, Q): I(f"v_pk_add_f32 {v(R_,2)}, {v(R_,2)}, {v(R_+2,2)}")
    for R_ in (T, Q): I(f"v_pk_add_f32 {v(R_,2)}, {v(R_,2)}, {v(R_+4,2)}")
    for R_ in (T, Q): I(f"v_add_f32 {v(R_)}, {v(R_)}, {v(R_+1)}")
    for op in ("v_permlane16_swap_b32", "v_permlane32_swap_b32"):
        for R_ in (T, Q): I(f"v_mov_b32 {v(R_+1)}, {v(R_)}")
        I("s_nop 1")
        for R_ in (T, Q): I(f"{op} {v(R_)}, {v(R_+1)}")
        I("s_nop 1")
        for R_ in (T, Q): I(f"v_add_f32 {v(R_)}, {v(R_)}, {v(R_+1)}")
    I(f"v_mul_f32 {v(T)}, {v(T)}, v12")
    I(f"v_mul_f32 {v(T+1)}, {v(T)}, {v(T)}")
    I(f"v_fma_f32 {v(Q)}, -{v(Q)}, v12, -{v(T+1)}")
    I(f"v_max_f32 {v(Q)}, 0, {v(Q)}")
    I(f"v_fma_f32 {v(Q)}, {v(Q)}, v13, v14")
    I(f"v_rsq_f32 {v(Q)}, {v(Q)}")
    I("s_nop 0")
    I(f"v_mul_f32 {v(T)}, {v(T)}, {v(Q)}")
    for j in range(12): I(f"v_pk_fma_f32 {v(X+2*j,2)}, {v(X+2*j,2)}, {v(Q,2)}, {v(T,2)} op_sel_hi:[1,0,0]")
    for j in range(12): I(f"v_cvt_pk_bf16_f32 {v(T+j)}, {v(X+2*j)}, {v(X+2*j+1)}")
    if left:
        I("v_cmp_gt_u32 vcc, 4, v2"); I("s_nop 1")
        for j in range(12): I(f"v_cndmask_b32 {v(T+j)}, 0, {v(T+j)}, vcc")
    for sI in range(3):
        I(f"ds_write_b128 v6, {v(T+4*sI,4)} offset:{sI*1024}")
LN(False)
I(f"s_cmp_eq_u32 {s(S_WAVE)}, 0")
I("s_cbranch_scc0 L_ln1")
I("v_min_u32 v5, 3, v2")
I("v_add_u32 v5, 192, v5")
pixaddr("v5", "v5")
I(f"s_mov_b32 {s(S_T1)}, {R2 + yoff(12)}")
I("s_waitcnt lgkmcnt(0)")
LN(True)
LBL("L_ln1")
C("wave 1: make sure every WG has cleared its hand-off slots before anything is polled")
I(f"s_cmp_eq_u32 {s(S_WAVE)}, 1")
I("s_cbranch_scc0 L_ln2")
I(f"s_mov_b32 {s(S_CNT)}, {SPIN}")
I("s_branch L_p0b")
LBL("L_p0")
I(f"buffer_load_dword v15, v9, {s(SD,4)}, 0 offen sc1")
LBL("L_p0b")
I("s_waitcnt vmcnt(0)")
I(f"v_readfirstlane_b32 {s(S_T1)}, v15")
I(f"s_cmp_ge_u32 {s(S_T1)}, 256")
I("s_cbranch_scc1 L_ln2")
spin_tail("L_p0")
LBL("L_ln2")
I("v_bfe_u32 v9, v1, 2, 2")
I("v_lshl_add_u32 v10, v3, 3, v9")
I("v_mul_u32_u24 v10, 768, v10")
I("v_and_b32 v11, 3, v1")
I("v_lshl_add_u32 v10, v11, 3, v10")
I("v_and_b32 v11, 1, v3")
I("v_lshl_or_b32 v9, v11, 2, v9")
I(f"s_lshl_b32 {s(S_T0)}, {s(S_WAVE)}, 1")
I(f"v_xor_b32 v11, {s(S_T0)}, v9")
I("v_lshl_add_u32 v5, v11, 5, v10")
I("v_xor_b32 v11, 1, v11")
I("v_lshl_add_u32 v6, v11, 5, v10")
YB1 = 40000
I(f"v_add_u32 v7, {R2}, v4")
I(f"v_add_u32 v8, {R2+YB1}, v4")
c0 = -2.0 * (2.0/3.141592653589793)**0.5 * 1.4426950408889634
CC0, CONE = 164, 166
for r in (CC0, CC0+1): I(f"v_mov_b32 {v(r)}, {hex(f2u(-C0/AS))}")
for r in (CONE, CONE+1): I(f"v_mov_b32 {v(r)}, 1.0")
W1F, YB, DB, TT, SSQ, HR = 16, 40, 64, 80, 96, 104
for j in range(8): I(f"v_mov_b32 {v(SSQ+j)}, 0")
I("v_mul_u32_u24 v9, 43691, v0")
I("v_lshrrev_b32 v9, 21, v9")
I("v_and_b32 v9, 1, v9")
I("v_lshlrev_b32 v9, 1, v9")
I("v_mul_u32_u24 v10, 43691, v0")
I("v_lshrrev_b32 v10, 19, v10")
I("v_mul_u32_u24 v10, 12, v10")
I("v_sub_u32 v11, v0, v10")
I("v_xor_b32 v9, v9, v11")
I("v_add_u32 v9, v9, v10")
I("v_lshlrev_b32 v9, 4, v9")
I("s_waitcnt vmcnt(0) lgkmcnt(0)")
I("s_barrier")
stamp()
def yread(p):
    out = []
    for sI in range(3):
        o = yoff(p) + sI*1024
        base, o = ("v7", o) if o < 60000 else ("v8", o - YB1)
        out.append(f"ds_read_b128 {v(YB+12*(p%2)+4*sI,4)}, {base} offset:{o}")
    return out
for T in range(2):
    for sI in range(3):
        for t in range(2):
            I(f"ds_read_b64_tr_b16 {v(W1F+12*T+4*sI+2*t,2)}, {'v5' if T==0 else 'v6'} offset:{(32*sI+4*t)*768}")
for x in yread(0) + yread(1): I(x)
I("s_waitcnt lgkmcnt(6)")
I("s_barrier")
dma(SW2, "v9")
def mfmas(p):
    out = []
    for sI in range(3):
        for T in range(2):
            d = DB + 8*(p%2) + 4*T
            out.append(f"v_mfma_f32_16x16x32_bf16 {v(d,4)}, {v(W1F+12*T+4*sI,4)}, {v(YB+12*(p%2)+4*sI,4)}, {v(d,4) if sI else '0'}")
    return out
def gelu(p):
    X = DB + 8*(p%2); T = TT + 8*(p%2); o = []
    P = range(4)
    o += [f"v_pk_fma_f32 {v(T+2*j,2)}, {v(X+2*j,2)}, {v(X+2*j,2)}, {v(CC0,2)} neg_lo:[1,0,0] neg_hi:[1,0,0]" for j in P]
    o += [f"v_pk_mul_f32 {v(T+2*j,2)}, {v(X+2*j,2)}, {v(T+2*j,2)}" for j in P]
    o += [f"v_exp_f32 {v(T+j)}, {v(T+j)}" for j in range(8)]
    o += [f"v_pk_add_f32 {v(T+2*j,2)}, {v(T+2*j,2)}, {v(CONE,2)}" for j in P]
    o += [f"v_rcp_f32 {v(T+j)}, {v(T+j)}" for j in range(8)]
    o += [f"v_pk_mul_f32 {v(T+2*j,2)}, {v(X+2*j,2)}, {v(T+2*j,2)}" for j in P]
    o += [f"v_pk_fma_f32 {v(SSQ+2*j,2)}, {v(T+2*j,2)}, {v(T+2*j,2)}, {v(SSQ+2*j,2)}" for j in P]
    o += [f"v_cvt_pk_bf16_f32 {v(HR+4*p+j)}, {v(T+2*j)}, {v(T+2*j+1)}" for j in P]
    return o
I("s_waitcnt lgkmcnt(3)")
for x in mfmas(0): I(x)
I("s_nop 7")
for p in range(13):
    g = gelu(p)
    if p < 12:
        m = mfmas(p+1)
        pos = MPOS
        for idx, x in enumerate(g):
            if idx == pos[0]: I("s_waitcnt lgkmcnt(0)")
            if idx in pos: I(m[pos.index(idx)])
            if idx == pos[-1] + 2 and p + 2 <= 12:
                for y in yread(p+2): I(y)
            I(x)
    else:
        for x in g: I(x)
    if p == 8:
        I("s_waitcnt vmcnt(0) lgkmcnt(0)")
        I("s_barrier")
stamp()
for sh in (8, 4, 2, 1):
    for j in range(8):
        I(f"v_add_f32_dpp {v(SSQ+j)}, {v(SSQ+j)}, {v(SSQ+j)} row_ror:{sh} row_mask:0xf bank_mask:0xf")
I("v_cmp_eq_u32 vcc, 1, v2")
I("v_lshlrev_b32 v5, 4, v3")
I("v_lshl_add_u32 v5, v2, 6, v5")
for j in range(4): I(f"v_cndmask_b32 {v(SSQ+j)}, {v(SSQ+j)}, {v(SSQ+4+j)}, vcc")
for j in range(4): I(f"v_or_b32 {v(SSQ+j)}, {s(S_OOB)}, {v(SSQ+j)}")
I(f"s_mul_i32 {s(S_T0)}, s2, 1536")
I(f"s_lshl_b32 {s(S_T1)}, {s(S_WAVE)}, 7")
I(f"s_add_u32 {s(S_T0)}, {s(S_T0)}, {s(S_T1)}")
I("s_mov_b32 exec_lo, 0x00030003"); I("s_mov_b32 exec_hi, 0x00030003")
I(f"buffer_store_dwordx4 {v(SSQ,4)}, v5, {s(SWS,4)}, {s(S_T0)} offen sc1")
I("s_mov_b64 exec, -1")
WP = 16
I("v_bfe_u32 v5, v1, 2, 2")
I("v_lshl_add_u32 v5, v3, 2, v5")
I("v_mul_u32_u24 v5, 192, v5")
I("v_and_b32 v6, 3, v1")
I("v_lshl_add_u32 v5, v6, 3, v5")
I("v_and_b32 v6, 1, v3")
I(f"v_xor_b32 v6, {s(S_G6)}, v6")
I("v_lshl_add_u32 v5, v6, 5, v5")
I(f"v_add_u32 v6, {6*6144}, v5")
for ks in range(12):
    for t in range(2):
        I(f"ds_read_b64_tr_b16 {v(WP+4*ks+2*t,2)}, {'v5' if ks<6 else 'v6'} offset:{(ks%6)*6144+t*3072}")
I(f"s_lshl_b32 {s(S_T0)}, {s(S_WAVE)}, 10")
I(f"v_add_u32 v5, {s(S_T0)}, v4")
I(f"v_add_u32 v6, {5*12288}, v5")
I(f"v_add_u32 v7, {10*12288}, v5")
I("v_lshl_add_u32 v8, v3, 2, v2")
I("v_lshlrev_b32 v8, 4, v8")
I(f"s_lshl_b32 {s(S_T0)}, {s(S_WAVE)}, 8")
I(f"s_add_u32 {s(S_T0)}, {s(S_T0)}, {HLEFT}")
I(f"v_add_u32 v8, {s(S_T0)}, v8")
for p in range(6, 12):
    I(f"ds_write_b128 {v(5+p//5)}, {v(HR+4*p,4)} offset:{(p%5)*12288}")
I("s_waitcnt lgkmcnt(6)")
I("s_barrier")
for p in range(6):
    I(f"ds_write_b128 {v(5+p//5)}, {v(HR+4*p,4)} offset:{(p%5)*12288}")
I("s_mov_b32 exec_lo, 0x000f000f"); I("s_mov_b32 exec_hi, 0x000f000f")
I(f"ds_write_b128 v8, {v(HR+48,4)}")
I("s_mov_b64 exec, -1")
def wavesum(regs, t):
    for sh in (8, 4, 2, 1):
        for r in regs: I(f"v_add_f32_dpp {v(r)}, {v(r)}, {v(r)} row_ror:{sh} row_mask:0xf bank_mask:0xf")
        if len(regs) < 3: I("s_nop 1")
    for op in ("v_permlane16_swap_b32", "v_permlane32_swap_b32"):
        for k, r in enumerate(regs): I(f"v_mov_b32 {v(t+k)}, {v(r)}")
        I("s_nop 1")
        for k, r in enumerate(regs): I(f"{op} {v(r)}, {v(t+k)}")
        I("s_nop 1")
        for k, r in enumerate(regs): I(f"v_add_f32 {v(r)}, {v(r)}, {v(t+k)}")
def red8(regs, t):
    for r in regs: I(f"v_add_f32_dpp {v(r)}, {v(r)}, {v(r)} row_ror:8 row_mask:0xf bank_mask:0xf")
    for op in ("v_permlane16_swap_b32", "v_permlane32_swap_b32"):
        for k, r in enumerate(regs): I(f"v_mov_b32 {v(t+k)}, {v(r)}")
        I("s_nop 1")
        for k, r in enumerate(regs): I(f"{op} {v(r)}, {v(t+k)}")
        I("s_nop 1")
        for k, r in enumerate(regs): I(f"v_add_f32 {v(r)}, {v(r)}, {v(t+k)}")
C("WG<12: reduce one 128-B column (32 channels) over all 256 rows; waves 2..9 take 32 rows each")
I("s_cmp_ge_u32 s2, 12")
I("s_cbranch_scc1 L_nored")
I(f"s_sub_u32 {s(S_T0)}, {s(S_WAVE)}, 2")
I(f"s_cmp_ge_u32 {s(S_T0)}, 8")
I("s_cbranch_scc1 L_rb")
I("v_lshrrev_b32 v9, 3, v1")
I("v_mul_u32_u24 v9, 1536, v9")
I("v_and_b32 v10, 7, v1")
I("v_lshlrev_b32 v10, 4, v10")
I("v_add_u32 v9, v9, v10")
I(f"s_mul_i32 {s(S_T1)}, {s(S_T0)}, {32*1536}")
I(f"s_lshl_b32 {s(S_T2)}, s2, 7")
I(f"s_add_u32 {s(S_T1)}, {s(S_T1)}, {s(S_T2)}")
I(f"v_add_u32 v9, {s(S_T1)}, v9")
I(f"s_lshl_b32 {s(S_T0)}, {s(S_T0)}, 7")
I(f"s_add_u32 {s(S_T0)}, {s(S_T0)}, {ROFF}")
I(f"v_add_u32 v10, {s(S_T0)}, v10")
I(f"s_mov_b32 {s(S_CNT)}, {SPIN}")
poll("L_p1", [f"buffer_load_dwordx4 {v(64+4*q,4)}, v9, {s(SWS,4)}, {s(S_K+q)} offen sc1" for q in range(4)], list(range(64, 80)), 80)
for j in range(4):
    I(f"v_add_f32 {v(64+j)}, abs({v(64+j)}), abs({v(68+j)})")
    I(f"v_add_f32 {v(72+j)}, abs({v(72+j)}), abs({v(76+j)})")
for j in range(4): I(f"v_add_f32 {v(64+j)}, {v(64+j)}, {v(72+j)}")
I("s_nop 1")
red8([64, 65, 66, 67], 68)
I("s_mov_b64 exec, 0xff")
I("ds_write_b128 v10, v[64:67]")
I("s_mov_b64 exec, -1")
I("s_waitcnt lgkmcnt(0)")
LBL("L_rb")
I("s_barrier")
I(f"s_cmp_eq_u32 {s(S_WAVE)}, 2")
I("s_cbranch_scc0 L_nored")
I(f"v_add_u32 v9, {ROFF}, v4")
I("ds_read_b128 v[64:67], v9")
I(f"s_lshl_b32 {s(S_T0)}, s2, 7")
I(f"s_add_u32 {s(S_T0)}, {s(S_T0)}, {PART_BYTES}")
I("s_waitcnt lgkmcnt(0)")
red8([64, 65, 66, 67], 68)
for j in range(4): I(f"v_or_b32 {v(64+j)}, {s(S_OOB)}, {v(64+j)}")
I("s_mov_b64 exec, 0xff")
I(f"buffer_store_dwordx4 v[64:67], v4, {s(SWS,4)}, {s(S_T0)} offen sc1")
I("s_mov_b64 exec, -1")
LBL("L_nored")
stamp()
C("bias = beta @ W2 (MFMA, beta broadcast over columns)")
I(f"v_lshlrev_b32 v5, 3, v3")
I(f"v_add_u32 v5, {BOFF}, v5")
for ks in range(12):
    I(f"ds_read2_b64 {v(64+4*ks,4)}, v5 offset0:{8*ks} offset1:{8*ks+4}")
BIAS = 164
VO = 2
I(f"s_mul_i32 {s(S_T0)}, {s(S_HH)}, {7*12288}")
I(f"v_add_u32 v9, {s(S_T0)}, v4")
I(f"v_add_u32 v10, {4*12288}, v9")
I("v_min_u32 v11, 3, v2")
I("v_lshl_add_u32 v11, v3, 2, v11")
I("v_lshlrev_b32 v11, 4, v11")
I(f"v_add_u32 v11, {HLEFT}, v11")
I("v_min_u32 v12, 11, v2")
I("v_lshlrev_b32 v12, 7, v12")
I("v_lshl_add_u32 v12, v3, 4, v12")
I(f"v_add_u32 v12, {SOFF}, v12")
for q in range(7): I(f"v_mov_b32 {v(VO+q)}, {v(VO0+q)}")
I("s_waitcnt lgkmcnt(0)")
for ks in range(12):
    I(f"v_mfma_f32_16x16x32_bf16 {v(BIAS,4)}, {v(WP+4*ks,4)}, {v(64+4*ks,4)}, {v(BIAS,4) if ks else '0'}")
F = 64
I(f"s_mov_b32 {s(S_T3)}, 0xffff0000")
I(f"v_mov_b32 v15, {s(S_T3)}")
I("s_nop 7")
for ks in range(12):
    for j in range(4):
        I(f"v_lshlrev_b32 {v(F+8*ks+2*j)}, 16, {v(WP+4*ks+j)}")
        I(f"v_and_b32 {v(F+8*ks+2*j+1)}, v15, {v(WP+4*ks+j)}")
ACC, RING = 16, 44
for q in range(7):
    I(f"buffer_load_dwordx2 {v(RING+2*q,2)}, {v(VO+q)}, {s(SX,4)}, 0 offen")
I(f"s_cmp_eq_u32 {s(S_WAVE)}, 1")
I("s_cbranch_scc0 L_ng")
I("v_lshlrev_b32 v13, 3, v1")
I("v_lshlrev_b32 v14, 2, v1")
I(f"buffer_load_dwordx2 v[58:59], v13, {s(SG,4)}, 0 offen")
I(f"buffer_load_dword v60, v14, {s(SG,4)}, 0 offen offset:512")
LBL("L_ng")
I("s_waitcnt vmcnt(0)")
for q in range(7):
    for j in range(2):
        I(f"v_lshlrev_b32 {v(ACC+4*q+2*j)}, 16, {v(RING+2*q+j)}")
        I(f"v_and_b32 {v(ACC+4*q+2*j+1)}, {s(S_T3)}, {v(RING+2*q+j)}")
    for j in range(2):
        I(f"v_pk_add_f32 {v(ACC+4*q+2*j,2)}, {v(ACC+4*q+2*j,2)}, {v(BIAS+2*j,2)}")
stamp()
C("wave 1: wait for the 384 totals, compute the GRN scale")
I(f"s_cmp_eq_u32 {s(S_WAVE)}, 1")
I("s_cbranch_scc0 L_nos")
I("v_lshlrev_b32 v14, 4, v1")
I(f"s_mov_b32 {s(S_T0)}, {PART_BYTES}")
I(f"s_mov_b32 {s(S_CNT)}, {SPIN}")
poll("L_p2", [f"buffer_load_dwordx4 v[44:47], v14, {s(SWS,4)}, {s(S_T0)} offen sc1", f"buffer_load_dwordx2 v[48:49], v13, {s(SWS,4)}, {s(S_T0)} offen offset:1024 sc1"], list(range(44, 50)), 50)
I(f"v_mov_b32 v50, {hex(f2u(1e-6))}")
I(f"v_mov_b32 v51, {hex(f2u(1.0/AS**2))}")
for j in range(6): I(f"v_fma_f32 {v(44+j)}, abs({v(44+j)}), v51, v50")
for j in range(6): I(f"v_sqrt_f32 {v(44+j)}, {v(44+j)}")
I("s_nop 0")
I("v_add_f32 v51, v44, v45"); I("v_add_f32 v52, v46, v47"); I("v_add_f32 v53, v48, v49")
I("v_add_f32 v51, v51, v52"); I("v_add_f32 v51, v51, v53")
I("s_nop 1")
wavesum([51], 52)
I(f"v_mov_b32 v52, {hex(f2u(1.0/384))}")
I("v_fma_f32 v51, v51, v52, v50")
I("v_rcp_f32 v51, v51")
for j in range(3):
    I(f"v_lshlrev_b32 {v(52+2*j)}, 16, {v(58+j)}")
    I(f"v_and_b32 {v(53+2*j)}, {s(S_T3)}, {v(58+j)}")
I(f"v_mov_b32 v50, {hex(f2u(1.0/AS))}")
I("v_mul_f32 v51, v51, v50")
for j in range(6): I(f"v_mul_f32 {v(44+j)}, {v(44+j)}, v51")
for j in range(6): I(f"v_fma_f32 {v(44+j)}, {v(44+j)}, {v(52+j)}, v50")
I(f"v_add_u32 v14, {SOFF}, v14")
I(f"v_add_u32 v13, {SOFF+1024}, v13")
I("ds_write_b128 v14, v[44:47]")
I("ds_write_b64 v13, v[48:49]")
LBL("L_nos")
I("s_waitcnt lgkmcnt(0)")
I("s_barrier")
stamp()
SR = 160
NR = 5
def gemm2(half):
    nt = 7 if half == 0 else 6
    def rd(idx):
        ks, q = divmod(idx, nt)
        dst = v(RING + 4*(idx % NR), 4)
        if half == 1 and q == 5: return f"ds_read_b128 {dst}, v11 offset:{ks*256}"
        return f"ds_read_b128 {dst}, {'v9' if q < 4 else 'v10'} offset:{(q%4)*12288+ks*1024}"
    def scale(ks):
        o = [f"v_mul_f32_dpp {v(F+8*ks+j)}, {v(SR+j)}, {v(F+8*ks+j)} row_newbcast:{ks} row_mask:0xf bank_mask:0xf" for j in range(8)]
        o += [f"v_cvt_pk_bf16_f32 {v(F+8*ks+j)}, {v(F+8*ks+2*j)}, {v(F+8*ks+2*j+1)}" for j in range(4)]
        return o
    I(f"ds_read_b128 {v(SR,4)}, v12")
    I(f"ds_read_b128 {v(SR+4,4)}, v12 offset:64")
    for idx in range(NR): I(rd(idx))
    I(f"s_waitcnt lgkmcnt({NR})")
    for x in scale(0): I(x)
    I("s_nop 1")
    tot = 12 * nt
    for ks in range(12):
        sc = scale(ks+1) if ks < 11 else []
        for q in range(nt):
            idx = ks*nt + q
            I(f"s_waitcnt lgkmcnt({min(NR-1, tot-1-idx)})")
            I(f"v_mfma_f32_16x16x32_bf16 {v(ACC+4*q,4)}, {v(F+8*ks,4)}, {v(RING+4*(idx%NR),4)}, {v(ACC+4*q,4)}")
            if idx + NR < tot: I(rd(idx+NR))
            if q < 5:
                n = [3, 3, 2, 2, 2][q]
                for x in sc[:n]: I(x)
                sc = sc[n:]
    I("s_nop 7")
    for q in range(nt):
        I(f"v_cvt_pk_bf16_f32 {v(RING+2*q)}, {v(ACC+4*q)}, {v(ACC+4*q+1)}")
        I(f"v_cvt_pk_bf16_f32 {v(RING+2*q+1)}, {v(ACC+4*q+2)}, {v(ACC+4*q+3)}")
        I(f"buffer_store_dwordx2 {v(RING+2*q,2)}, {v(VO+q)}, {s(SO,4)}, 0 offen")
I(f"s_cmp_eq_u32 {s(S_HH)}, 0")
I("s_cbranch_scc0 L_g2b")
gemm2(0)
I("s_branch L_fin")
LBL("L_g2b")
gemm2(1)
LBL("L_fin")
if STAMP:
    I("s_waitcnt vmcnt(0)")
    stamp()
    C("diagnostic build only: wave STAMP-1 of each WG writes its stamps to ws + 1 MiB")
    I(f"s_cmp_eq_u32 {s(S_WAVE)}, {STAMP-1}")
    I("s_cbranch_scc0 L_end")
    I("s_memrealtime s[48:49]")
    I("s_waitcnt lgkmcnt(0)")
    I(f"s_mov_b32 {s(SWS+2)}, 0x200000")
    I(f"s_lshl_b32 {s(S_T0)}, s2, 6")
    I(f"s_add_u32 {s(S_T0)}, {s(S_T0)}, 0x100000")
    I("v_mov_b32 v1, 0")
    for k in range(nstamp[0]):
        I(f"v_mov_b32 v2, {s(S_ST+2*k)}")
        I(f"buffer_store_dword v2, v1, {s(SWS,4)}, {s(S_T0)} offen offset:{4*k}")
if STAMP:
    I("v_mov_b32 v2, s100")
    I(f"buffer_store_dword v2, v1, {s(SWS,4)}, {s(S_T0)} offen offset:56")
    I("v_mov_b32 v2, s48")
    I(f"buffer_store_dword v2, v1, {s(SWS,4)}, {s(S_T0)} offen offset:60")
LBL("L_end")
I("s_endpgm")
L += ['.section .rodata,"a"', ".p2align 6", f".amdhsa_kernel {NAME}_kernel",
      "  .amdhsa_next_free_vgpr 168", "  .amdhsa_next_free_sgpr 102", "  .amdhsa_accum_offset 168",
      "  .amdhsa_group_segment_fixed_size 0", "  .amdhsa_kernarg_size 72", "  .amdhsa_user_sgpr_count 2",
      "  .amdhsa_user_sgpr_kernarg_segment_ptr 1", "  .amdhsa_system_sgpr_workgroup_id_x 1", ".end_amdhsa_kernel"]
open(sys.argv[1], "w").write("\n".join(L) + "\n")
```
